```python
import torch

def _softmax(x, axis=-1):
    return torch.softmax(x, dim=axis)
def _gelu(x):
    return torch.nn.functional.gelu(x, approximate="tanh")
def _silu(x):
    return torch.nn.functional.silu(x)
def _sigmoid(x):
    return torch.sigmoid(x)
def _layernorm(x, axis=-1, eps=1e-5):
    m = x.mean(dim=axis, keepdim=True)
    v = x.var(dim=axis, keepdim=True, unbiased=False)
    return (x - m) / torch.sqrt(v + eps)
def _scatter_add(tgt, idx, src, axis=0):
    return tgt.clone().index_add_(axis, idx, src)
def _segment_sum(src, seg, n):
    out = torch.zeros((n,) + src.shape[1:], dtype=src.dtype)
    return out.index_add_(0, seg, src)
def _pad(x, pw):
    flat = tuple(v for pair in reversed(pw) for v in pair)
    return torch.nn.functional.pad(x, flat)

kernel_name = 'gated_mix__linear_attn_block__linear_attn_block__prompt'

def setup_inputs():

    _w = (lambda a: (lambda t: t.to(torch.bfloat16) if t.is_floating_point() else t)(torch.as_tensor(a)))
    def _A_setup():
        B, S, D = 1, 2048, 1024
        return {
            "x": _w((lambda *s: torch.randn(*s, dtype=torch.bfloat16) * 0.05)(B, S, D)),
            "wqkv": _w((lambda *s: torch.randn(*s, dtype=torch.bfloat16) * 0.8)(D, 3 * D)),
            "wo": _w((lambda *s: torch.randn(*s, dtype=torch.bfloat16) * 0.05)(D, D)),
        }
    _A_in = _A_setup()

    def _B_setup():
        B, S, D = 1, 2048, 1024
        return {
            "x": _w((lambda *s: torch.randn(*s, dtype=torch.bfloat16) * 0.05)(B, S, D)),
            "wqkv": _w((lambda *s: torch.randn(*s, dtype=torch.bfloat16) * 0.8)(D, 3 * D)),
            "wo": _w((lambda *s: torch.randn(*s, dtype=torch.bfloat16) * 0.05)(D, D)),
        }
    _B_in = _B_setup()

    return {
        "A_x": _A_in["x"],
        "A_wqkv": _A_in["wqkv"],
        "A_wo": _A_in["wo"],
        "B_x": _B_in["x"],
        "B_wqkv": _B_in["wqkv"],
        "B_wo": _B_in["wo"],
        "gate_w": _w((lambda *s: torch.randn(*s, dtype=torch.bfloat16) * 0.05)(1024) * 16.0),
    }

def reference(A_x, A_wqkv, A_wo, B_x, B_wqkv, B_wo, gate_w):
    def _A_ref(x, wqkv, wo):
        B, S, D = x.shape
        H = 32; Dh = D // H
        qkv = (lambda x, *d: x.permute(*d))((x @ wqkv).reshape(B, S, 3, H, Dh), 2, 0, 3, 1, 4)
        q, k, v = qkv[0], qkv[1], qkv[2]
        phi = lambda t: torch.where(t > 0, t + 1, torch.exp(t)) + 1e-6
        pq, pk = phi(q), phi(k)
        kv = torch.einsum("bhsd,bhse->bhde", pk, v)
        z = torch.einsum("bhsd->bhd", pk)
        num = torch.einsum("bhqd,bhde->bhqe", pq, kv)
        den = torch.einsum("bhqd,bhd->bhq", pq, z)[..., None] + 1e-6
        o = num / den
        return (lambda x, *d: x.permute(*d))(o, 0, 2, 1, 3).reshape(B, S, D) @ wo

    def _B_ref(x, wqkv, wo):
        B, S, D = x.shape
        H = 32; Dh = D // H
        qkv = (lambda x, *d: x.permute(*d))((x @ wqkv).reshape(B, S, 3, H, Dh), 2, 0, 3, 1, 4)
        q, k, v = qkv[0], qkv[1], qkv[2]
        phi = lambda t: torch.where(t > 0, t + 1, torch.exp(t)) + 1e-6
        pq, pk = phi(q), phi(k)
        kv = torch.einsum("bhsd,bhse->bhde", pk, v)
        z = torch.einsum("bhsd->bhd", pk)
        num = torch.einsum("bhqd,bhde->bhqe", pq, kv)
        den = torch.einsum("bhqd,bhd->bhq", pq, z)[..., None] + 1e-6
        o = num / den
        return (lambda x, *d: x.permute(*d))(o, 0, 2, 1, 3).reshape(B, S, D) @ wo

    x = A_x
    g = _sigmoid((x * gate_w).sum(-1, keepdims=True))
    a = _A_ref(x, A_wqkv, A_wo)
    b = _B_ref(x, B_wqkv, B_wo)
    return g * a + (1 - g) * b
```

```python
KNAME = "gated_mix__linear_attn_block__linear_attn_block__prompt"

HEADER = """; Kernarg layout for this problem (80 bytes, ptrs only, base s[0:1]):
"""


class Asm:
    def __init__(self):
        self.lines = []
        self.nlab = 0

    def __call__(self, s):
        for ln in s.strip("\n").split("\n"):
            self.lines.append("    " + ln.strip() if not ln.strip().endswith(":") else ln.strip())

    def label(self, name):
        self.lines.append(name + ":")

    def newlabel(self, base="L"):
        self.nlab += 1
        return "%s_%d" % (base, self.nlab)

    def comment(self, s):
        self.lines.append("    ; " + s)

    def text(self):
        return "\n".join(self.lines) + "\n"


def kernel_begin(name):
    return (".globl %s\n.p2align 8\n.type %s,@function\n%s:\n" % (name, name, name))


def kernel_desc(name, vgpr, sgpr, accum):
    return """.p2align 6
.amdhsa_kernel %s
  .amdhsa_next_free_vgpr %d
  .amdhsa_next_free_sgpr %d
  .amdhsa_accum_offset %d
  .amdhsa_group_segment_fixed_size 0
  .amdhsa_kernarg_size 80
  .amdhsa_user_sgpr_count 2
  .amdhsa_user_sgpr_kernarg_segment_ptr 1
  .amdhsa_system_sgpr_workgroup_id_x 1
.end_amdhsa_kernel
""" % (name, vgpr, sgpr, accum)


def v(a, n=1):
    return "v%d" % a if n == 1 else "v[%d:%d]" % (a, a + n - 1)


def a(a_, n=1):
    return "a%d" % a_ if n == 1 else "a[%d:%d]" % (a_, a_ + n - 1)


def s(a_, n=1):
    return "s%d" % a_ if n == 1 else "s[%d:%d]" % (a_, a_ + n - 1)
```

```python
import sys
from asmlib import *

FL = 0
F_FULL = 0
F_PROGX = 1024
F_PROGW = 2048
F_PROGX2 = 3072
XR = 4096
XSLOT = 32768
WR = XR + 3 * XSLOT
WSLOT = 12288
LDS_P1 = WR + 5 * WSLOT
assert LDS_P1 == 163840

WS_OP = 0
WS_KVP = 8 << 20
WS_ZP = 10 << 20
WS_G = (10 << 20) + (64 << 10)
WS_DBG = 16 << 20
WS_SIZE = 256 << 20

LOG2E = 0x3FB8AA3B
EPS = 0x358637BD
SPIN_MAX = 200000


class LdsQ:
    def __init__(self, A):
        self.A = A
        self.q = []

    def issue(self, text, tag):
        self.A(text)
        self.q.append(tag)
        assert len(self.q) <= 15, "too many LDS ops outstanding: %s" % self.q

    def need(self, *tags):
        idx = -1
        for t in tags:
            for i, x in enumerate(self.q):
                if x == t:
                    idx = max(idx, i)
        if idx < 0:
            return
        n = len(self.q) - 1 - idx
        self.A("s_waitcnt lgkmcnt(%d)" % n)
        self.q = self.q[idx + 1:]

    def drain(self):
        self.A("s_waitcnt lgkmcnt(0)")
        self.q = []


V_AN = 0
V_B = 1
V_FA = 2
V_PX = 3
V_PW = 4
V_F = 6
VA = [8, 24]
VB = 40
ACC = 64


def acc(i, j):
    return ACC + (j * 8 + i) * 4


def mfma(A, d, a_, b_, c=None):
    cc = v(d, 4) if c is None else c
    A("v_mfma_f32_16x16x32_bf16 %s, %s, %s, %s" % (v(d, 4), v(a_, 4), v(b_, 4), cc))


def p1_common_prologue(A, o):
    A(f"""
    s_cmp_ge_u32 s2, 256
    s_cbranch_scc1 L_p1_end
    s_load_dwordx4 s[4:7], s[0:1], 0       ; x, wqkvA
    s_load_dwordx2 s[8:9], s[0:1], 32      ; wqkvB
    s_load_dwordx2 s[10:11], s[0:1], 48    ; gate_w
    s_load_dwordx4 s[12:15], s[0:1], 64
    v_lshrrev_b32 v2, 6, v0
    v_and_b32 v1, 63, v0                   ; lane
    s_and_b32 s40, s2, 7
    v_readfirstlane_b32 s41, v2
    s_lshr_b32 s42, s2, 3
    s_and_b32 s43, s42, 3
    s_lshl_b32 s44, s40, 2
    s_add_u32 s44, s44, s43                ; cb 0..31
    s_lshr_b32 s45, s42, 2                 ; rb 0..7
    s_lshr_b32 s46, s44, 4                 ; branch
    s_and_b32 s47, s44, 15
    """)
    if o.get("rot", 2) == "rb":
        A("""
        s_add_u32 s48, s40, s45
        s_lshl_b32 s48, s48, 1
        s_and_b32 s48, s48, 15
        """)
    else:
        A(f"""
        s_mul_i32 s48, s40, {o.get('rot', 2)}
        s_and_b32 s48, s48, 15
        """)
    A(f"""
    s_waitcnt lgkmcnt(0)
    s_mov_b32 s20, s4
    s_mov_b32 s21, s5
    s_mov_b32 s22, 0x400000
    s_mov_b32 s23, 0x20000
    s_cmp_eq_u32 s46, 0
    s_cselect_b32 s24, s6, s8
    s_cselect_b32 s25, s7, s9
    s_mov_b32 s26, 0x600000
    s_mov_b32 s27, 0x20000
    s_mov_b32 s28, s14
    s_mov_b32 s29, s15
    s_mov_b32 s30, 0x10000000
    s_mov_b32 s31, 0x20000
    s_mov_b32 s32, s10
    s_mov_b32 s33, s11
    s_mov_b32 s34, 2048
    s_mov_b32 s35, 0x20000
    s_mov_b32 s36, s12
    s_mov_b32 s37, s13
    s_mov_b32 s38, 256
    s_mov_b32 s39, 0x20000
    """)


def stamp(A, o, idx, tmp_s=90, vt=14, off=0):
    if not o.get("stamps"):
        return
    A(f"""
    s_memrealtime s[{tmp_s}:{tmp_s+1}]
    s_lshl_b32 s{tmp_s+2}, s2, 9
    s_lshl_b32 s{tmp_s+3}, s41, 6
    s_add_u32 s{tmp_s+2}, s{tmp_s+2}, s{tmp_s+3}
    s_add_u32 s{tmp_s+2}, s{tmp_s+2}, {WS_DBG + (32 << 20) + off + idx * 4}
    s_memtime s[{tmp_s+4}:{tmp_s+5}]
    s_waitcnt lgkmcnt(0)
    v_mov_b32 v{vt}, s{tmp_s}
    v_mov_b32 v{vt+1}, 0
    buffer_store_dword v{vt}, v{vt+1}, s[28:31], s{tmp_s+2} offen
    v_mov_b32 v{vt}, s{tmp_s+4}
    buffer_store_dword v{vt}, v{vt+1}, s[28:31], s{tmp_s+2} offen offset:32
    """)


F_CNT = 0
F_PROG = 1024


def loader(A, o):
    xf = o.get("xflags", "")
    wf = o.get("wflags", "")
    CAP = o.get("cap", 36)
    A(f"""
    L_ld:
    s_setprio {o.get('lprio', 0)}
    ; x voffsets
    v_lshrrev_b32 v3, 3, v1                ; l>>3
    s_lshl_b32 s51, s45, 8
    v_add_u32 v3, s51, v3
    v_lshlrev_b32 v3, 11, v3               ; row*2048
    v_lshrrev_b32 v4, 4, v1
    v_and_b32 v5, 7, v1
    v_xor_b32 v4, v4, v5
    v_lshlrev_b32 v5, 4, v4
    v_add_u32 v10, v3, v5
    v_xor_b32 v11, 64, v10
    ; w voffsets
    v_lshrrev_b32 v3, 3, v1
    v_mul_u32_u24 v3, 6144, v3
    v_lshrrev_b32 v4, 4, v1
    v_and_b32 v4, 1, v4
    v_lshlrev_b32 v4, 2, v4
    v_and_b32 v5, 7, v1
    v_xor_b32 v4, v4, v5
    v_lshlrev_b32 v4, 4, v4
    s_lshl_b32 s51, s47, 7
    v_add_u32 v3, s51, v3
    v_add_u32 v12, v3, v4
    v_xor_b32 v13, 32, v12
    v_and_b32 v3, 3, v1
    v_lshlrev_b32 v16, 8, v3
    v_mov_b32 v20, v10
    v_add_u32 v21, {16384-1024}, v11
    v_add_u32 v22, {2*(16384-1024)}, v10
    v_add_u32 v23, {3*(16384-1024)}, v11
    v_mov_b32 v24, v12
    v_add_u32 v25, {8*6144-1024}, v13
    v_add_u32 v26, {2*(8*6144-1024)}, v12
    v_add_u32 v27, {3*(8*6144-1024)}, v13
    s_mov_b32 s52, {XR}
    s_mov_b32 s53, {WR}
    s_lshl_b32 s54, s48, 7
    s_mul_i32 s55, s48, {64*6144}
    s_mov_b32 s56, 2
    s_mov_b32 s57, 0
    s_mov_b32 s60, 0
    """)
    state = dict(since={})

    def signal(expr_sub):
        A(f"""
        s_sub_u32 s61, s56, {expr_sub}
        s_max_u32 s60, s60, s61
        v_mov_b32 v14, s60
        ds_write_b32 v16, v14 offset:{F_CNT}
        """)

    capevery = o.get("capevery", 1)

    def dma(kind, idx, cap):
        if cap is not None and idx % capevery == 0:
            A(f"s_waitcnt vmcnt({cap})")
        q = idx & 3
        if kind == "x":
            if q == 0:
                A(f"s_add_u32 m0, s52, {idx*1024}")
                A(f"s_add_u32 s58, s54, {idx*16384}")
            if not o.get("nodma"):
                A(f"buffer_load_dwordx4 v{20 + q}, s[20:23], s58 offen offset:{q*1024} {xf} lds")
        else:
            p = idx >> 2
            if q == 0:
                A(f"s_add_u32 m0, s53, {idx*1024}")
                A(f"s_add_u32 s58, s55, {p*2048}")
            if not o.get("nodma"):
                A(f"buffer_load_dwordx4 v{24 + q}, s[24:27], s58 offen offset:{q*1024} {wf} lds")

    def advance(kind):
        if kind == "x":
            A(f"""
            s_add_u32 s54, s54, 128
            s_and_b32 s54, s54, 2047
            s_add_u32 s52, s52, {XSLOT}
            s_cmp_ge_u32 s52, {XR + 3*XSLOT}
            s_cselect_b32 s52, {XR}, s52
            """)
        else:
            A(f"""
            s_add_u32 s55, s55, {32*6144}
            s_cmp_ge_u32 s55, {1024*6144}
            s_cselect_b32 s55, 0, s55
            s_add_u32 s53, s53, {WSLOT}
            s_cmp_ge_u32 s53, {WR + 5*WSLOT}
            s_cselect_b32 s53, {WR}, s53
            """)
        A("s_add_u32 s56, s56, 1")

    def read_prog():
        A(f"""
        ds_read_b32 v17, v16 offset:{F_PROG}
        s_waitcnt lgkmcnt(0)
        v_readlane_b32 s62, v17, 0
        v_readlane_b32 s63, v17, 1
        v_readlane_b32 s64, v17, 2
        v_readlane_b32 s65, v17, 3
        s_min_u32 s62, s62, s63
        s_min_u32 s64, s64, s65
        s_min_u32 s57, s62, s64
        """)

    sizes = {"x": 32, "w": 12}

    def unit(kind, prev_sizes, lab, check=True, cap=CAP):
        n = sizes[kind]
        if check:
            A(f"""
            s_add_u32 s59, s57, 9
            s_cmp_ge_u32 s59, s56
            s_cbranch_scc1 {lab}_go
            """)
            read_prog()
            A(f"""
            s_add_u32 s59, s57, 9
            s_cmp_ge_u32 s59, s56
            s_cbranch_scc1 {lab}_go
            """)
            cum = [sum(prev_sizes[:k]) for k in range(len(prev_sizes))]
            for k in reversed(range(len(prev_sizes))):
                if cum[k] > cap:
                    continue
                A(f"s_waitcnt vmcnt({cum[k]})")
                signal(k + 1)
            A(f"s_mov_b32 s66, 0")
            A(f"{lab}_spin:")
            read_prog()
            A(f"""
            s_add_u32 s66, s66, 1
            s_cmp_ge_u32 s66, {SPIN_MAX*8}
            s_cbranch_scc1 {lab}_go
            s_add_u32 s59, s57, 9
            s_cmp_ge_u32 s59, s56
            s_cbranch_scc0 {lab}_spin
            {lab}_go:
            """)
        for idx in range(n):
            dma(kind, idx, cap)
            for k in range(len(prev_sizes)):
                younger = sum(prev_sizes[:k]) + idx
                if younger == cap:
                    signal(k + 1)
        advance(kind)

    unit("w", [], "L_u0", check=False, cap=None)
    A("s_barrier")
    unit("x", [12], "L_u1", check=False, cap=None)
    unit("w", [], "L_u2", check=False, cap=None)
    A("s_waitcnt vmcnt(12)")
    signal(2)
    unit("w", [12], "L_u3", check=False)
    unit("x", [12, 12], "L_u4", check=False)
    A("L_ld_loop:")
    unit("w", [32, 12, 12], "L_ua")
    unit("w", [12, 32, 12], "L_ub")
    unit("x", [12, 12, 32], "L_uc")
    A(f"""
    s_cmp_lt_u32 s56, {3*15+4}
    s_cbranch_scc1 L_ld_loop
    """)
    unit("w", [32, 12, 12], "L_ud")
    A("s_waitcnt vmcnt(44)")
    signal(3)
    A("s_waitcnt vmcnt(12)")
    signal(2)
    A("s_waitcnt vmcnt(0)")
    A("s_mov_b32 s56, 1001")
    signal(1)
    A("s_waitcnt lgkmcnt(0)")
    A("s_branch L_ld_done")


def consumer_main(A, o):
    A(f"""
    s_setprio {o.get('cprio', 0)}
    s_lshr_b32 s50, s41, 1
    s_and_b32 s51, s41, 1
    v_lshlrev_b32 v12, 4, v0
    v_mov_b32 v16, 0
    v_mov_b32 v17, 0
    v_mov_b32 v18, 0
    v_mov_b32 v19, 0
    ds_write_b128 v12, v[16:19]
    v_mov_b32 v5, v1                       ; lane
    v_and_b32 v12, 15, v5
    s_lshl_b32 s52, s50, 7
    v_add_u32 v12, s52, v12
    v_lshlrev_b32 v12, 7, v12
    v_lshrrev_b32 v13, 4, v5
    v_bfe_u32 v14, v5, 1, 3
    v_xor_b32 v13, v13, v14
    v_lshlrev_b32 v13, 4, v13
    v_add_u32 v12, v12, v13
    v_add_u32 v{V_AN}, {XR}, v12
    v_lshrrev_b32 v12, 4, v5               ; g
    v_lshlrev_b32 v13, 10, v12
    v_bfe_u32 v14, v5, 2, 2                ; r
    v_lshlrev_b32 v15, 7, v14
    v_add_u32 v13, v13, v15
    v_and_b32 v14, 2, v14                  ; ((r>>1)&1)*2
    v_and_b32 v12, 1, v12
    v_or_b32 v12, v12, v14                 ; s
    s_lshl_b32 s52, s51, 1
    v_xor_b32 v12, s52, v12
    v_lshlrev_b32 v12, 5, v12
    v_add_u32 v13, v13, v12
    v_and_b32 v12, 3, v5
    v_lshlrev_b32 v12, 3, v12
    v_add_u32 v13, v13, v12
    v_add_u32 v{V_B}, {WR}, v13
    v_xor_b32 v5, 32, v{V_B}
    s_lshl_b32 s52, s41, 8
    s_mov_b32 m0, s52
    v_mov_b32 v{V_PW}, 1
    s_waitcnt lgkmcnt(0)
    s_barrier
    """)
    V_B2 = 5
    for r in range(ACC, 256):
        A(f"v_mov_b32 v{r}, 0")
    A(f"""
    s_mov_b32 s52, 0
    s_mov_b32 s53, 0
    s_mov_b32 s54, 0                       ; t
    s_mov_b32 s55, 3
    """)
    Q = LdsQ(A)

    def spin(label, both):
        A(f"""
        s_mov_b32 s63, 0
        {label}:
        ds_read_addtid_b32 v{V_F} offset:{F_CNT}
        s_waitcnt lgkmcnt(0)
        s_add_u32 s63, s63, 1
        v_readfirstlane_b32 s56, v{V_F}
        s_cmp_ge_u32 s63, {SPIN_MAX*8}
        s_cbranch_scc1 {label}_out
        s_cmp_ge_u32 s56, s55
        s_cbranch_scc0 {label}
        {label}_out:
        """)

    def rdA(i, tag):
        if o.get("noA"):
            return
        Q.issue(f"ds_read_b128 {v(VA[i >> 2] + 4*(i & 3), 4)}, v{V_AN} offset:{i*2048}", tag)

    def rdB(j, half, tag):
        if o.get("noB"):
            return
        ad = V_B2 if (j & 1) else V_B
        Q.issue(f"ds_read_b64_tr_b16 {v(VB + 4*j + 2*half, 2)}, v{ad} offset:{(j >> 1)*4096 + half*512}", tag)

    spin("L_c_spin0", True)
    stamp(A, o, 1)
    for i in range(4):
        rdA(i, "a%d" % i)
    for j in range(5):
        rdB(j, 0, "b%d" % j); rdB(j, 1, "b%d" % j)
    Q.drain()
    slow = []

    def loop_body():
        for st in range(2):
            fill = {}
            def at(n, fn):
                fill.setdefault(n, []).append(fn)
            at(1, lambda: rdB(5, 0, "b5"))
            at(2, lambda: rdB(5, 1, "b5"))
            at(3, lambda: Q.issue(f"ds_write_addtid_b32 v{V_PW} offset:{F_PROG}", "pw"))
            at(4, lambda: A(f"s_add_u32 s53, s53, 1\ns_cmp_eq_u32 s53, 5"))
            at(5, lambda: Q.issue(f"ds_read_addtid_b32 v{V_F} offset:{F_CNT}", "f"))
            at(5, lambda: A(f"s_cselect_b32 s53, 0, s53"))
            at(6, lambda: rdA(4, "a4"))
            at(6, lambda: A(f"s_cselect_b32 s57, s70, s71"))
            at(7, lambda: A(f"v_add_u32 v{V_B}, s57, v{V_B}"))
            at(8, lambda: rdA(5, "a5"))
            at(9, lambda: A(f"v_add_u32 v{V_B2}, s57, v{V_B2}"))
            at(10, lambda: rdA(6, "a6"))
            at(11, lambda: A(f"v_add_u32 v{V_PW}, 1, v{V_PW}"))
            at(12, lambda: rdA(7, "a7"))
            at(14, lambda: A(f"s_add_u32 s55, s55, {1 if st == 0 else 2}"))
            if st == 0:
                at(15, lambda: A(f"v_xor_b32 v{V_AN}, 64, v{V_AN}"))
            else:
                at(13, lambda: Q.issue(f"ds_write_addtid_b32 v{V_PW} offset:{F_PROG}", "px"))
                at(15, lambda: A(f"s_add_u32 s52, s52, 1\ns_cmp_eq_u32 s52, 3"))
                at(16, lambda: A(f"s_cselect_b32 s52, 0, s52\ns_cselect_b32 s57, s72, s73"))
                at(17, lambda: A(f"v_xor_b32 v{V_AN}, 64, v{V_AN}"))
                at(18, lambda: A(f"v_add_u32 v{V_AN}, s57, v{V_AN}"))
                at(19, lambda: A(f"v_add_u32 v{V_PW}, 1, v{V_PW}"))
            at(22, lambda: A(f"v_readfirstlane_b32 s56, v{V_F}"))
            def chk():
                lab = f"L_c_slow{st}"
                A(f"s_cmp_ge_u32 s56, s55")
                if not o.get("noflags"):
                    A(f"s_cbranch_scc0 {lab}")
                A(f"{lab}_ret:")
                slow.append((lab, st == 1))
            at(24, chk)
            at(25, lambda: rdA(0, "a0"))
            at(26, lambda: rdA(1, "a1"))
            at(27, lambda: rdA(2, "a2"))
            at(31, lambda: rdA(3, "a3"))
            for j in range(5):
                at(24 + 4*(j+1) + 1, lambda j=j: rdB(j, 0, "b%d" % j))
                at(24 + 4*(j+1) + 2, lambda j=j: rdB(j, 1, "b%d" % j))
            if st == 1:
                at(47, lambda: A("s_add_u32 s54, s54, 1"))
                at(48, lambda: A("s_cmp_lt_u32 s54, 16\ns_cbranch_scc1 L_c_loop"))
            n = 0
            for g in range(2):
                for j in range(6):
                    for ii in range(4):
                        i = g * 4 + ii
                        n += 1
                        if g == 0 and ii == 0:
                            if j == 0:
                                Q.need("a0", "a1", "a2", "a3", "b0")
                            elif j == 5:
                                Q.need("b5", "f")
                            else:
                                Q.need("b%d" % j)
                        if g == 1 and j == 0 and ii == 0:
                            Q.need("a4", "a5", "a6", "a7")
                        ar = VA[g] + 4*ii
                        br = VB + 4*j
                        if j < 2:
                            mfma(A, acc(i, j), br, ar)
                        else:
                            mfma(A, acc(i, j), ar, br)
                        for fn in fill.get(n, []):
                            fn()

    A(f"""
    s_mov_b32 s70, {(-4*WSLOT) & 0xffffffff}
    s_mov_b32 s71, {WSLOT}
    s_mov_b32 s72, {(-2*XSLOT) & 0xffffffff}
    s_mov_b32 s73, {XSLOT}
    s_mov_b32 s74, 0
    s_mov_b32 s75, 0
    """)
    saved = A.lines
    A.lines = []
    loop_body()
    carried = list(Q.q)
    A.lines = []
    loop_body()
    assert Q.q == carried, (Q.q, carried)
    A.lines = saved
    del slow[:]
    if o.get("align"):
        A(f".p2align {o['align']}")
    A("L_c_loop:")
    loop_body()
    A("s_branch L_c_done")
    for lab, both in slow:
        A(f"{lab}:")
        spin(lab + "_sp", both)
        if o.get("stamps"):
            A("s_add_u32 s74, s74, s63")
            A("s_add_u32 s75, s75, 1")
        A(f"s_branch {lab}_ret")
    A("L_c_done:")
    A("s_waitcnt lgkmcnt(0)")
    if o.get("stamps"):
        A(f"""
        s_lshl_b32 s92, s2, 9
        s_lshl_b32 s93, s41, 6
        s_add_u32 s92, s92, s93
        s_add_u32 s92, s92, {WS_DBG + (32 << 20) + 6 * 4}
        v_mov_b32 v14, s74
        v_mov_b32 v15, s75
        v_mov_b32 v13, 0
        buffer_store_dwordx2 v[14:15], v13, s[28:31], s92 offen
        """)
    A("v_mbcnt_lo_u32_b32 v1, -1, 0")
    A("v_mbcnt_hi_u32_b32 v1, -1, v1")


E_XCH = XR
E_OPS = XR + 16384
KV_ACC = 8
Z_ACC = 24
ONES = 32
TMP = 36


def phi8(A, regs, tmp, pack_dst):
    for k in range(0, 8, 2):
        assert regs[k + 1] == regs[k] + 1
        A(f"v_pk_mul_f32 {v(tmp + k, 2)}, {v(regs[k], 2)}, s[76:77]")
    for k in range(8):
        A(f"v_exp_f32 v{tmp + k}, v{tmp + k} clamp")
    for k in range(8):
        A(f"v_max_f32 v{regs[k]}, s78, v{regs[k]}")
    for k in range(0, 8, 2):
        A(f"v_pk_add_f32 {v(regs[k], 2)}, {v(regs[k], 2)}, {v(tmp + k, 2)}")
    for k in range(4):
        A(f"v_cvt_pk_bf16_f32 v{pack_dst + k}, v{regs[2*k]}, v{regs[2*k+1]}")


def consumer_epilogue(A, o):
    A(f"""
    s_mov_b32 s76, {LOG2E}
    s_mov_b32 s77, {LOG2E}
    s_mov_b32 s78, {EPS}
    v_mov_b32 v{ONES}, 0x3f803f80
    v_mov_b32 v{ONES+1}, 0x3f803f80
    v_mov_b32 v{ONES+2}, 0x3f803f80
    v_mov_b32 v{ONES+3}, 0x3f803f80
    v_lshlrev_b32 v2, 4, v1                ; lane*16
    s_nop 4
    """)
    for ip in range(4):
        for jk in range(2):
            b = acc(2*ip, 2 + jk)
            phi8(A, list(range(b, b + 8)), TMP + 8*jk, b)
        for jv in range(2):
            b = acc(2*ip, 4 + jv)
            for k in range(4):
                A(f"v_cvt_pk_bf16_f32 v{b + k}, v{b + 2*k}, v{b + 2*k + 1}")
        A("s_nop 1")
        for jk in range(2):
            pk = acc(2*ip, 2 + jk)
            c0 = "0" if ip == 0 else None
            mfma(A, Z_ACC + 4*jk, pk, ONES, c0)
            for jv in range(2):
                mfma(A, KV_ACC + (jk*2 + jv)*4, pk, acc(2*ip, 4 + jv), c0)
    A(f"""
    s_mul_i32 s60, s41, 3072
    s_xor_b32 s61, s41, 2
    s_mul_i32 s61, s61, 3072
    v_add_u32 v3, s60, v2
    v_add_u32 v4, s61, v2
    s_lshl_b32 s62, s44, 1
    s_add_u32 s62, s62, s51
    s_lshl_b32 s62, s62, 1
    s_add_u32 s62, s62, s50                ; (..)*2 + jk
    s_lshl_b32 s63, s62, 14                ; KVP: *2 tiles * 8 rb * 1024
    s_lshl_b32 s64, s45, 10
    s_add_u32 s63, s63, s64
    s_add_u32 s63, s63, {WS_KVP}
    s_add_u32 s64, s63, 8192
    s_lshl_b32 s65, s62, 9                 ; ZP: * 8 rb * 64
    s_lshl_b32 s66, s45, 6
    s_add_u32 s65, s65, s66
    s_add_u32 s65, s65, {WS_ZP}
    v_lshrrev_b32 v5, 4, v1
    v_lshlrev_b32 v5, 4, v5                ; g*16
    s_barrier
    s_cmp_eq_u32 s50, 0
    s_cbranch_scc0 L_e_wm1
    """)
    for wm in range(2):
        if wm == 1:
            A("L_e_wm1:")
        keep, send = wm, 1 - wm
        A("s_nop 2")
        A(f"ds_write_b128 v3, {v(KV_ACC + (send*2)*4, 4)} offset:{E_XCH}")
        A(f"ds_write_b128 v3, {v(KV_ACC + (send*2+1)*4, 4)} offset:{E_XCH + 1024}")
        A(f"ds_write_b128 v3, {v(Z_ACC + send*4, 4)} offset:{E_XCH + 2048}")
        A("s_waitcnt lgkmcnt(0)")
        A("s_barrier                              ; B1")
        A(f"ds_read_b128 {v(TMP, 4)}, v4 offset:{E_XCH}")
        A(f"ds_read_b128 {v(TMP+4, 4)}, v4 offset:{E_XCH + 1024}")
        A(f"ds_read_b128 {v(TMP+8, 4)}, v4 offset:{E_XCH + 2048}")
        A("s_waitcnt lgkmcnt(0)")
        k0 = KV_ACC + keep*8
        for k in range(0, 8, 2):
            A(f"v_pk_add_f32 {v(TMP + k, 2)}, {v(TMP + k, 2)}, {v(k0 + k, 2)}")
        for k in range(0, 4, 2):
            A(f"v_pk_add_f32 {v(TMP + 8 + k, 2)}, {v(TMP + 8 + k, 2)}, {v(Z_ACC + keep*4 + k, 2)}")
        if wm == 0:
            A("s_branch L_e_pub")
    A(f"""
    L_e_pub:
    buffer_store_dwordx4 {v(TMP, 4)}, v2, s[28:31], s63 offen sc0 sc1
    buffer_store_dwordx4 {v(TMP+4, 4)}, v2, s[28:31], s64 offen sc0 sc1
    s_mov_b32 exec_lo, 0x00010001
    s_mov_b32 exec_hi, 0x00010001
    buffer_store_dwordx4 {v(TMP+8, 4)}, v5, s[28:31], s65 offen sc0 sc1
    s_mov_b64 exec, -1
    """)
    T2 = 48
    def phiq(i):
        a_, b_ = acc(i, 0), acc(i, 1)
        phi8(A, [a_, a_+1, a_+2, a_+3, b_, b_+1, b_+2, b_+3], T2 + 8*(i & 1), a_)
    nfirst = o.get("qfirst", 2)
    for i in range(nfirst):
        phiq(i)
    A("s_waitcnt vmcnt(0)")
    A("s_barrier                              ; B2")
    stamp(A, o, 4)
    for i in range(nfirst, 8):
        phiq(i)
    A(f"""
    s_mul_i32 s60, s51, 3072
    v_add_u32 v3, s60, v2
    ; o' store offset: ((rb*16 + wm*8 + i)*64 + br*32 + hp*2 + wn)*1024
    s_lshl_b32 s60, s45, 4
    s_lshl_b32 s61, s50, 3
    s_add_u32 s60, s60, s61
    s_lshl_b32 s60, s60, 6
    s_lshl_b32 s61, s44, 1
    s_add_u32 s60, s60, s61
    s_add_u32 s60, s60, s51
    s_lshl_b32 s60, s60, 10
    s_barrier                              ; B3
    ds_read_b128 v[8:11], v3 offset:{E_OPS}
    ds_read_b128 v[12:15], v3 offset:{E_OPS + 1024}
    ds_read_b128 v[16:19], v3 offset:{E_OPS + 2048}
    s_waitcnt lgkmcnt(0)
    """)
    stamp(A, o, 5, vt=20)
    for i in range(8):
        pq = acc(i, 0)
        n0 = acc(0, 2) + i * 12
        mfma(A, n0 + 8, 16, pq, "0")
        mfma(A, n0, 8, pq, "0")
        mfma(A, n0 + 4, 12, pq, "0")
    for i in range(8):
        n0 = acc(0, 2) + i * 12
        if i == 7:
            A("s_nop 3")
        A(f"v_add_f32 v{n0 + 8}, s78, v{n0 + 8}")
        A(f"v_rcp_f32 v{n0 + 8}, v{n0 + 8}")
        A("s_nop 0")
        for k in range(0, 8, 2):
            A(f"v_pk_mul_f32 {v(n0 + k, 2)}, {v(n0 + k, 2)}, {v(n0 + 8, 2)} op_sel_hi:[1,0]")
        for k in range(4):
            A(f"v_cvt_pk_bf16_f32 v{n0 + k}, v{n0 + 2*k}, v{n0 + 2*k + 1}")
        A(f"buffer_store_dwordx4 {v(n0, 4)}, v2, s[28:31], s60 offen {o.get('opflags', '')}")
        A(f"s_add_u32 s60, s60, 65536")


def gate(A, o):
    A(f"""
    s_lshl_b32 s60, s45, 8
    s_lshl_b32 s61, s44, 3
    s_add_u32 s60, s60, s61
    s_lshl_b32 s61, s60, 11
    v_lshlrev_b32 v2, 4, v1
    buffer_load_dwordx4 v[32:35], v2, s[32:35], 0 offen
    buffer_load_dwordx4 v[36:39], v2, s[32:35], 0 offen offset:1024
    """)
    for r in range(8):
        A(f"buffer_load_dwordx4 {v(40 + 8*r, 4)}, v2, s[20:23], s61 offen")
        A(f"buffer_load_dwordx4 {v(44 + 8*r, 4)}, v2, s[20:23], s61 offen offset:1024")
        A("s_add_u32 s61, s61, 2048")
    for r in range(8):
        A(f"v_mov_b32 v{20 + r}, 0")
    for r in range(8):
        A(f"s_waitcnt vmcnt({14 - 2*r})")
        for k in range(8):
            A(f"v_dot2c_f32_bf16 v{20 + r}, v{40 + 8*r + k}, v{32 + k}")
    A("s_nop 3")
    for mod in ("row_shr:1", "row_shr:2", "row_shr:4", "row_shr:8", "row_bcast:15 row_mask:0xa", "row_bcast:31 row_mask:0xc"):
        for r in range(8):
            m = mod if "row_mask" in mod else mod + " row_mask:0xf"
            A(f"v_add_f32_dpp v{20 + r}, v{20 + r}, v{20 + r} {m} bank_mask:0xf")
    A(f"s_mov_b32 s61, 0xbfb8aa3b")
    for r in range(8):
        A(f"v_mul_f32 v{20 + r}, s61, v{20 + r}")
    for r in range(8):
        A(f"v_exp_f32 v{20 + r}, v{20 + r}")
    for r in range(8):
        A(f"v_add_f32 v{20 + r}, 1.0, v{20 + r}")
    for r in range(8):
        A(f"v_rcp_f32 v{20 + r}, v{20 + r}")
    A(f"""
    s_lshl_b32 s60, s60, 2
    s_add_u32 s60, s60, {WS_G}
    v_mov_b32 v2, 0
    s_mov_b32 exec_lo, 0
    s_mov_b32 exec_hi, 0x80000000
    buffer_store_dwordx4 v[20:23], v2, s[28:31], s60 offen {o.get('opflags', '')}
    buffer_store_dwordx4 v[24:27], v2, s[28:31], s60 offen offset:16 {o.get('opflags', '')}
    s_mov_b64 exec, -1
    """)


def helper_epilogue(A, o):
    A(f"""
    s_sub_u32 s50, s41, 4
    s_lshl_b32 s62, s44, 2
    s_add_u32 s62, s62, s50                ; (cb*2+head)*2+jk
    s_lshl_b32 s63, s62, 14
    s_add_u32 s63, s63, {WS_KVP}
    s_lshl_b32 s65, s62, 9
    s_add_u32 s65, s65, {WS_ZP}
    v_lshlrev_b32 v2, 4, v1
    v_lshrrev_b32 v5, 4, v1
    v_lshlrev_b32 v5, 4, v5
    s_lshr_b32 s60, s50, 1
    s_mul_i32 s60, s60, 3072
    s_and_b32 s61, s50, 1
    s_lshl_b32 s61, s61, 3
    s_add_u32 s60, s60, s61
    v_add_u32 v3, s60, v2
    s_lshl_b32 s66, s44, 2
    v_mov_b32 v6, 0
    v_mov_b32 v7, 1
    s_barrier                              ; B0
    s_barrier                              ; B1
    s_barrier                              ; B2
    s_cmp_eq_u32 s41, 4
    s_cbranch_scc0 L_h_poll
    s_mov_b64 exec, 1
    buffer_atomic_add v7, v6, s[36:39], s66 offen sc1
    s_mov_b64 exec, -1
    L_h_poll:
    s_mov_b32 s67, 0
    L_h_spin:
    buffer_load_dword v8, v6, s[36:39], s66 offen sc0 sc1
    s_waitcnt vmcnt(0)
    s_add_u32 s67, s67, 1
    v_readfirstlane_b32 s68, v8
    s_cmp_ge_u32 s67, {SPIN_MAX}
    s_cbranch_scc1 L_h_go
    s_cmp_ge_u32 s68, 8
    s_cbranch_scc0 L_h_spin
    L_h_go:
    """)
    stamp(A, o, 4)
    for t in range(2):
        for rb in range(8):
            A(f"s_add_u32 s69, s63, {t*8192 + (rb >> 2)*4096}" if rb % 4 == 0 else "")
            A(f"buffer_load_dwordx4 {v(32 + (t*8 + rb)*4, 4)}, v2, s[28:31], s69 offen offset:{(rb & 3)*1024} sc0 sc1")
    for rb in range(8):
        A(f"buffer_load_dwordx4 {v(96 + rb*4, 4)}, v5, s[28:31], s65 offen offset:{rb*64} sc0 sc1")
    base = 2 if o.get("stamps") else 0
    for t in range(3):
        b = 32 + t*32
        for rb in range(1, 8):
            A(f"s_waitcnt vmcnt({24 - (t*8 + rb + 1)})")
            for k in (0, 2):
                A(f"v_pk_add_f32 {v(b + k, 2)}, {v(b + k, 2)}, {v(b + rb*4 + k, 2)}")
        A(f"v_cvt_pk_bf16_f32 v{b}, v{b}, v{b+1}")
        A(f"v_cvt_pk_bf16_f32 v{b+1}, v{b+2}, v{b+3}")
        A(f"ds_write_b64 v3, {v(b, 2)} offset:{E_OPS + t*1024}")
    A("s_waitcnt lgkmcnt(0)")
    A("s_barrier                              ; B3")


def gen_p1(o):
    A = Asm()
    p1_common_prologue(A, o)
    stamp(A, o, 0)
    A("""
    s_cmp_eq_u32 s41, 4
    s_cbranch_scc1 L_ld
    s_cmp_gt_u32 s41, 4
    s_cbranch_scc1 L_helper
    """)
    consumer_main(A, o)
    stamp(A, o, 2)
    consumer_epilogue(A, o)
    stamp(A, o, 3, vt=20)
    A("s_endpgm")
    loader(A, o)
    A("L_helper:")
    A("s_barrier")
    A("s_branch L_h_epi")
    A("L_ld_done:")
    gate(A, o)
    A("L_h_epi:")
    helper_epilogue(A, o)
    A("L_p1_end:")
    A("s_endpgm")
    return A


P3_NSLOT = 19
P3_SLOT = 8192
P3_RING = 4096
LDS_P3 = P3_RING + P3_NSLOT * P3_SLOT
P3_D = 3


def gen_p3(o):
    A = Asm()
    D = o.get("p3d", P3_D)
    NB = D + 1
    A(f"""
    s_cmp_ge_u32 s2, 256
    s_cbranch_scc1 L_p3_end
    s_load_dwordx2 s[4:5], s[0:1], 16      ; woA
    s_load_dwordx2 s[6:7], s[0:1], 40      ; woB
    s_load_dwordx2 s[8:9], s[0:1], 56      ; out
    s_load_dwordx2 s[14:15], s[0:1], 72    ; ws
    v_lshrrev_b32 v2, 6, v0
    v_and_b32 v1, 63, v0
    s_and_b32 s40, s2, 7
    v_readfirstlane_b32 s41, v2
    s_lshr_b32 s42, s2, 3
    s_lshr_b32 s43, s40, 1
    s_lshl_b32 s43, s43, 2
    s_lshr_b32 s44, s42, 3
    s_add_u32 s44, s44, s43                ; rt
    s_and_b32 s43, s40, 1
    s_lshl_b32 s43, s43, 3
    s_and_b32 s45, s42, 7
    s_add_u32 s45, s45, s43                ; ct
    s_waitcnt lgkmcnt(0)
    s_mov_b32 s20, s4
    s_mov_b32 s21, s5
    s_mov_b32 s22, 0x200000
    s_mov_b32 s23, 0x20000
    s_mov_b32 s24, s6
    s_mov_b32 s25, s7
    s_mov_b32 s26, 0x200000
    s_mov_b32 s27, 0x20000
    s_mov_b32 s28, s14
    s_mov_b32 s29, s15
    s_mov_b32 s30, 0x10000000
    s_mov_b32 s31, 0x20000
    s_mov_b32 s32, s8
    s_mov_b32 s33, s9
    s_mov_b32 s34, 0x400000
    s_mov_b32 s35, 0x20000
    """)
    stamp(A, o, 0, off=(8 << 20))
    A("""
    s_cmp_eq_u32 s41, 4
    s_cbranch_scc1 L3_ld
    s_cmp_gt_u32 s41, 4
    s_cbranch_scc1 L_p3_end
    """)
    p3_consumer(A, o, D, NB)
    A("s_endpgm")
    p3_loader(A, o)
    A("L_p3_end:")
    A("s_endpgm")
    return A


def p3_loader(A, o):
    CAP = o.get("p3cap", 16)
    A(f"""
    L3_ld:
    s_setprio {o.get('lprio', 0)}
    v_lshrrev_b32 v3, 3, v1
    v_lshlrev_b32 v3, 11, v3
    v_bfe_u32 v4, v1, 4, 2
    v_lshlrev_b32 v4, 1, v4
    v_and_b32 v5, 7, v1
    v_xor_b32 v4, v4, v5
    v_lshlrev_b32 v4, 4, v4
    s_lshl_b32 s51, s45, 7
    v_add_u32 v3, s51, v3
    v_add_u32 v20, v3, v4
    v_add_u32 v21, {16384-1024}, v20
    v_add_u32 v22, {2*(16384-1024)}, v20
    v_add_u32 v23, {3*(16384-1024)}, v20
    v_and_b32 v3, 3, v1
    v_lshlrev_b32 v16, 8, v3
    s_mov_b32 s52, {P3_RING}
    s_mov_b32 s54, 0
    s_mov_b32 s56, 0
    s_mov_b32 s57, 0
    """)

    def unit():
        for br in range(2):
            A(f"s_add_u32 m0, s52, {br*4096}")
            A(f"s_waitcnt vmcnt({CAP})")
            for q in range(4):
                A(f"buffer_load_dwordx4 v{20+q}, s[{20+4*br}:{23+4*br}], s54 offen offset:{q*1024} lds")
        A(f"""
        s_add_u32 s54, s54, 65536
        s_add_u32 s52, s52, {P3_SLOT}
        s_cmp_ge_u32 s52, {LDS_P3}
        s_cselect_b32 s52, {P3_RING}, s52
        s_add_u32 s56, s56, 1
        """)

    def sig(sub):
        A(f"""
        s_sub_u32 s61, s56, {sub}
        v_mov_b32 v14, s61
        ds_write_b32 v16, v14 offset:{F_CNT}
        """)

    unit()
    A("s_barrier")
    A("L3_ld_loop:")
    A(f"""
    s_add_u32 s59, s57, {P3_NSLOT}
    s_cmp_gt_u32 s59, s56
    s_cbranch_scc1 L3_go
    s_waitcnt vmcnt(0)
    """)
    sig(0)
    A(f"""
    s_mov_b32 s66, 0
    L3_spin:
    ds_read_b32 v17, v16 offset:{F_PROG}
    s_waitcnt lgkmcnt(0)
    v_readlane_b32 s62, v17, 0
    v_readlane_b32 s63, v17, 1
    v_readlane_b32 s64, v17, 2
    v_readlane_b32 s65, v17, 3
    s_min_u32 s62, s62, s63
    s_min_u32 s64, s64, s65
    s_min_u32 s57, s62, s64
    s_add_u32 s66, s66, 1
    s_cmp_ge_u32 s66, {SPIN_MAX*8}
    s_cbranch_scc1 L3_go
    s_add_u32 s59, s57, {P3_NSLOT}
    s_cmp_gt_u32 s59, s56
    s_cbranch_scc0 L3_spin
    L3_go:
    """)
    unit()
    A("s_waitcnt vmcnt(8)")
    sig(1)
    A(f"""
    s_cmp_lt_u32 s56, 32
    s_cbranch_scc1 L3_ld_loop
    s_waitcnt vmcnt(0)
    s_mov_b32 s56, 1000
    """)
    sig(0)
    A("s_waitcnt lgkmcnt(0)")
    A("s_barrier")
    A("s_barrier")
    A("s_endpgm")


def p3_consumer(A, o, D, NB):
    WF = [8, 24]
    OB = 40
    AC = 192
    assert OB + NB * 16 <= AC
    def ac(jn, i):
        return AC + (jn * 4 + i) * 4
    of = o.get("oploadflags", "")
    A(f"""
    s_lshr_b32 s50, s41, 1                 ; br
    s_and_b32 s51, s41, 1                  ; rh
    v_lshlrev_b32 v12, 4, v0
    v_mov_b32 v16, 0
    v_mov_b32 v17, 0
    v_mov_b32 v18, 0
    v_mov_b32 v19, 0
    ds_write_b128 v12, v[16:19]
    s_lshl_b32 s60, s44, 3
    s_lshl_b32 s61, s51, 2
    s_add_u32 s60, s60, s61                ; first rb16
    s_lshl_b32 s52, s60, 16
    s_lshl_b32 s61, s50, 15
    s_add_u32 s52, s52, s61                ; i=0 soffset
    s_add_u32 s53, s52, 65536
    s_add_u32 s54, s52, 131072
    s_add_u32 s55, s52, 196608
    v_lshlrev_b32 v2, 4, v1
    """)
    def ldO(buf):
        for i in range(4):
            A(f"buffer_load_dwordx4 {v(OB + buf*16 + 4*i, 4)}, v2, s[28:31], s{52+i} offen {of}")
        A("v_add_u32 v2, 1024, v2")
    for d in range(D):
        ldO(d)
    A(f"""
    v_lshrrev_b32 v12, 4, v1               ; g
    v_lshrrev_b32 v13, 1, v12
    v_lshlrev_b32 v13, 10, v13             ; (g>>1)*1024
    v_and_b32 v12, 1, v12
    v_lshlrev_b32 v12, 2, v12
    v_bfe_u32 v14, v1, 2, 2
    v_add_u32 v12, v12, v14                ; rr
    v_lshlrev_b32 v14, 7, v12
    v_add_u32 v13, v13, v14
    v_lshrrev_b32 v12, 1, v12              ; (rr>>1)&3
    v_lshlrev_b32 v12, 5, v12
    v_add_u32 v13, v13, v12
    v_and_b32 v12, 3, v1
    v_lshlrev_b32 v12, 3, v12
    v_add_u32 v13, v13, v12
    s_lshl_b32 s61, s50, 12
    s_add_u32 s61, s61, {P3_RING}
    v_add_u32 v4, s61, v13
    v_xor_b32 v5, 32, v4
    v_xor_b32 v6, 64, v4
    v_xor_b32 v7, 96, v4
    s_lshl_b32 s61, s41, 8
    s_mov_b32 m0, s61
    v_mov_b32 v3, 1
    s_mov_b32 s56, 0                       ; step
    s_mov_b32 s57, 0
    s_mov_b32 s58, 0
    s_mov_b32 s59, 1
    s_mov_b32 s70, {(-(P3_NSLOT-1)*P3_SLOT) & 0xffffffff}
    s_mov_b32 s71, {P3_SLOT}
    s_waitcnt lgkmcnt(0)
    s_barrier
    """)
    for r in range(AC, AC + 64):
        A(f"v_mov_b32 v{r}, 0")

    nl = [0]
    def wait_full():
        nl[0] += 1
        L = f"L3_w{nl[0]}"
        A(f"""
        s_cmp_ge_u32 s58, s59
        s_cbranch_scc1 {L}_ok
        s_mov_b32 s63, 0
        {L}:
        ds_read_addtid_b32 v0 offset:{F_CNT}
        s_waitcnt lgkmcnt(0)
        s_add_u32 s63, s63, 1
        v_readfirstlane_b32 s58, v0
        s_cmp_ge_u32 s63, {SPIN_MAX*8}
        s_cbranch_scc1 {L}_ok
        s_cmp_ge_u32 s58, s59
        s_cbranch_scc0 {L}
        {L}_ok:
        s_add_u32 s59, s59, 1
        """)

    def rdW(buf, jn, half):
        A(f"ds_read_b64_tr_b16 {v(WF[buf] + 4*jn + 2*half, 2)}, v{4+jn} offset:{half*2048}")

    def adv():
        A(f"""
        ds_write_addtid_b32 v3 offset:{F_PROG}
        s_add_u32 s57, s57, 1
        s_cmp_eq_u32 s57, {P3_NSLOT}
        s_cselect_b32 s57, 0, s57
        s_cselect_b32 s62, s70, s71
        """)

    wait_full()
    stamp(A, o, 1, off=(8 << 20), vt=38)
    if o.get("stamps"):
        A("s_waitcnt vmcnt(0)")
    for jn in range(4):
        rdW(0, jn, 0); rdW(0, jn, 1)
    adv()
    for jn in range(4):
        A(f"v_add_u32 v{4+jn}, s62, v{4+jn}")
    A("v_add_u32 v3, 1, v3")
    import math
    U = NB * 2 // math.gcd(NB, 2)
    assert 32 % U == 0, U
    A("L3_loop:")
    sadj = 2 if o.get("stamps") else 0
    for u in range(U):
        wb = u & 1
        ob = u % NB
        wait_full()
        A(f"s_waitcnt vmcnt({4*(D-1)}) lgkmcnt(0)")
        n = 0
        for jn in range(4):
            for i in range(4):
                n += 1
                mfma(A, ac(jn, i), WF[wb] + 4*jn, OB + ob*16 + 4*i)
                if n <= 8:
                    rdW(wb ^ 1, (n-1) >> 1, (n-1) & 1)
                if n == 9:
                    adv()
                if 10 <= n <= 13:
                    A(f"v_add_u32 v{4+n-10}, s62, v{4+n-10}")
                    A(f"buffer_load_dwordx4 {v(OB + ((u + D) % NB)*16 + 4*(n-10), 4)}, v2, s[28:31], s{52+n-10} offen {of}")
                if n == 14:
                    A("v_add_u32 v2, 1024, v2")
                    A("v_add_u32 v3, 1, v3")
    A(f"""
    s_add_u32 s56, s56, {U}
    s_cmp_lt_u32 s56, 32
    s_cbranch_scc1 L3_loop
    """)
    stamp(A, o, 2, off=(8 << 20), vt=38)
    A(f"""
    v_and_b32 v0, 15, v1
    v_lshlrev_b32 v0, 2, v0
    s_lshl_b32 s61, s60, 6
    s_add_u32 s61, s61, {WS_G}
    s_waitcnt vmcnt(0) lgkmcnt(0)
    buffer_load_dword v8, v0, s[28:31], s61 offen {of}
    buffer_load_dword v10, v0, s[28:31], s61 offen offset:64 {of}
    buffer_load_dword v12, v0, s[28:31], s61 offen offset:128 {of}
    buffer_load_dword v14, v0, s[28:31], s61 offen offset:192 {of}
    v_lshlrev_b32 v2, 4, v1
    s_lshl_b32 s62, s41, 13
    s_xor_b32 s63, s41, 2
    s_lshl_b32 s63, s63, 13
    v_add_u32 v3, s62, v2
    v_add_u32 v4, s63, v2
    ; out offset: row*2048 + ct*128 + br*64 + g*8 ; row = rb16*16 + (l&15)
    v_and_b32 v5, 15, v1
    v_lshlrev_b32 v5, 11, v5
    v_lshrrev_b32 v6, 4, v1
    v_lshlrev_b32 v6, 3, v6
    v_add_u32 v5, v5, v6
    s_lshl_b32 s62, s60, 15
    s_lshl_b32 s63, s45, 7
    s_add_u32 s62, s62, s63
    s_lshl_b32 s63, s50, 6
    s_add_u32 s62, s62, s63
    s_barrier
    s_waitcnt vmcnt(0)
    s_cmp_eq_u32 s50, 0
    s_cbranch_scc0 L3_br1
    """)
    for br in range(2):
        if br == 1:
            A("L3_br1:")
            for i in range(4):
                A(f"v_sub_f32 v{8+2*i}, 1.0, v{8+2*i}")
        keep = [0, 1] if br == 0 else [2, 3]
        send = [2, 3] if br == 0 else [0, 1]
        for k, jn in enumerate(send):
            for i in range(4):
                r = ac(jn, i)
                A(f"v_pk_mul_f32 {v(r, 2)}, {v(r, 2)}, {v(8+2*i, 2)} op_sel_hi:[1,0]")
                A(f"v_pk_mul_f32 {v(r+2, 2)}, {v(r+2, 2)}, {v(8+2*i, 2)} op_sel_hi:[1,0]")
                A(f"ds_write_b128 v3, {v(r, 4)} offset:{P3_RING + (k*4+i)*1024}")
        A("s_waitcnt lgkmcnt(0)")
        A("s_barrier")
        for k in range(8):
            A(f"ds_read_b128 {v(40 + 4*k, 4)}, v4 offset:{P3_RING + k*1024}")
        for k, jn in enumerate(keep):
            for i in range(4):
                r = ac(jn, i)
                t = 40 + (k*4 + i)*4
                A(f"s_waitcnt lgkmcnt({7 - (k*4+i)})")
                A(f"v_pk_fma_f32 {v(t, 2)}, {v(r, 2)}, {v(8+2*i, 2)}, {v(t, 2)} op_sel_hi:[1,0,1]")
                A(f"v_pk_fma_f32 {v(t+2, 2)}, {v(r+2, 2)}, {v(8+2*i, 2)}, {v(t+2, 2)} op_sel_hi:[1,0,1]")
                A(f"v_cvt_pk_bf16_f32 v{t}, v{t}, v{t+1}")
                A(f"v_cvt_pk_bf16_f32 v{t+1}, v{t+2}, v{t+3}")
                A(f"s_add_u32 s63, s62, {i*32768}")
                A(f"buffer_store_dwordx2 {v(t, 2)}, v5, s[32:35], s63 offen offset:{k*32}")
        stamp(A, o, 3, off=(8 << 20), vt=38)
        if br == 0:
            A("s_endpgm")


def build(o):
    n1 = "p1_kernel"
    n3 = "p3_kernel"
    A1 = gen_p1(o)
    A3 = gen_p3(o)
    txt = HEADER
    txt += f"; @launch kernel={n1} grid=(256,1,1) block=(512,1,1) lds={LDS_P1}\n"
    txt += f"; @launch kernel={n3} grid=(256,1,1) block=(320,1,1) lds={LDS_P3}\n"
    txt += '.amdgcn_target "amdgcn-amd-amdhsa--gfx950"\n.text\n'
    txt += kernel_begin(n1) + A1.text() + kernel_begin(n3) + A3.text()
    txt += '.section .rodata,"a"\n' + kernel_desc(n1, 256, 100, 256) + kernel_desc(n3, 256, 100, 256)
    return txt


if __name__ == "__main__":
    o = dict(lprio=3, cap=32)
    open(sys.argv[1] if len(sys.argv) > 1 else "k.s", "w").write(build(o))
```

```python
import sys, math
from asmlib import *

F_CNT = 0
F_CNT3 = 4
F_RDY = 8
F_PROG = 1024
F_PROG3 = 2048
F_SY = 3072
XR = 4096
XSLOT = 32768
WR = XR + 3 * XSLOT
WSLOT = 12288
LDS_TOTAL = WR + 5 * WSLOT
assert LDS_TOTAL == 163840
P3_RING = XR
P3_SLOT = 8192
P3_NSLOT = 17
E_XCH = P3_RING + P3_NSLOT * P3_SLOT
E_OPS = E_XCH + 12288
assert E_OPS + 6144 <= LDS_TOTAL

WS_OP = 0
WS_KVP = 8 << 20
WS_ZP = 10 << 20
WS_G = (10 << 20) + (64 << 10)
WS_DBG = 16 << 20

LOG2E = 0x3FB8AA3B
EPS = 0x358637BD
SPIN_MAX = 400000


class LdsQ:
    def __init__(self, A):
        self.A = A
        self.q = []

    def issue(self, text, tag):
        self.A(text)
        self.q.append(tag)
        assert len(self.q) <= 15, self.q

    def need(self, *tags):
        idx = -1
        for t in tags:
            for i, x in enumerate(self.q):
                if x == t:
                    idx = max(idx, i)
        if idx < 0:
            return
        self.A("s_waitcnt lgkmcnt(%d)" % (len(self.q) - 1 - idx))
        self.q = self.q[idx + 1:]

    def drain(self):
        self.A("s_waitcnt lgkmcnt(0)")
        self.q = []


V_AN, V_B, V_PW, V_B2, V_F = 0, 1, 4, 5, 6
VA = [8, 24]
VB = 40
ACC = 64


def acc(i, j):
    return ACC + (j * 8 + i) * 4


def mfma(A, d, a_, b_, c=None):
    cc = v(d, 4) if c is None else c
    A("v_mfma_f32_16x16x32_bf16 %s, %s, %s, %s" % (v(d, 4), v(a_, 4), v(b_, 4), cc))


def stamp(A, o, idx, vt=14, drain=False):
    if not o.get("stamps"):
        return
    t = 90
    A(f"""
    s_memrealtime s[{t}:{t+1}]
    s_lshl_b32 s{t+2}, s2, 10
    s_lshl_b32 s{t+3}, s41, 7
    s_add_u32 s{t+2}, s{t+2}, s{t+3}
    s_add_u32 s{t+2}, s{t+2}, {WS_DBG + (32 << 20) + idx * 4}
    s_memtime s[{t+4}:{t+5}]
    s_waitcnt lgkmcnt(0)
    v_mov_b32 v{vt}, s{t}
    v_mov_b32 v{vt+1}, 0
    buffer_store_dword v{vt}, v{vt+1}, s[28:31], s{t+2} offen
    v_mov_b32 v{vt}, s{t+4}
    buffer_store_dword v{vt}, v{vt+1}, s[28:31], s{t+2} offen offset:64
    """)
    if drain:
        A("s_waitcnt vmcnt(0)")


def prologue(A, o):
    A(f"""
    s_cmp_ge_u32 s2, 256
    s_cbranch_scc1 L_end
    s_load_dwordx4 s[4:7], s[0:1], 0       ; x, wqkvA
    s_load_dwordx2 s[80:81], s[0:1], 16    ; woA
    s_load_dwordx4 s[8:11], s[0:1], 32
    s_load_dwordx4 s[84:87], s[0:1], 48
    s_load_dwordx4 s[12:15], s[0:1], 64
    v_lshrrev_b32 v2, 6, v0
    v_and_b32 v1, 63, v0                   ; lane
    s_and_b32 s40, s2, 7
    v_readfirstlane_b32 s41, v2
    s_lshr_b32 s42, s2, 3
    s_and_b32 s43, s42, 3
    s_lshl_b32 s44, s40, 2
    s_add_u32 s44, s44, s43                ; cb 0..31
    s_lshr_b32 s45, s42, 2                 ; rb 0..7
    s_lshr_b32 s46, s44, 4                 ; branch
    s_and_b32 s47, s44, 15
    s_mul_i32 s48, s40, {o.get('rot', 2)}
    s_and_b32 s48, s48, 15
    ; P3 tile
    s_lshr_b32 s43, s40, 1
    s_lshl_b32 s43, s43, 2
    s_lshr_b32 s88, s42, 3
    s_lshl_b32 s49, s88, 3                 ; 8*r
    s_add_u32 s88, s88, s43                ; rt
    s_and_b32 s43, s40, 1
    s_lshl_b32 s43, s43, 3
    s_and_b32 s89, s42, 7
    s_lshl_b32 s3, s89, 2                  ; 4*c
    s_add_u32 s49, s49, s3
    s_and_b32 s49, s49, {31 if o.get('p3rot', 1) else 0}
    s_add_u32 s89, s89, s43                ; ct
    s_waitcnt lgkmcnt(0)
    s_mov_b32 s20, s4
    s_mov_b32 s21, s5
    s_mov_b32 s22, 0x400000
    s_mov_b32 s23, 0x20000
    s_cmp_eq_u32 s46, 0
    s_cselect_b32 s24, s6, s8
    s_cselect_b32 s25, s7, s9
    s_mov_b32 s26, 0x600000
    s_mov_b32 s27, 0x20000
    s_mov_b32 s28, s14
    s_mov_b32 s29, s15
    s_mov_b32 s30, 0x10000000
    s_mov_b32 s31, 0x20000
    """)


def read_prog(A, off, dst="s57"):
    A(f"""
    ds_read_b32 v17, v16 offset:{off}
    s_waitcnt lgkmcnt(0)
    v_readlane_b32 s62, v17, 0
    v_readlane_b32 s63, v17, 1
    v_readlane_b32 s64, v17, 2
    v_readlane_b32 s65, v17, 3
    s_min_u32 s62, s62, s63
    s_min_u32 s64, s64, s65
    s_min_u32 {dst}, s62, s64
    """)


def loader(A, o):
    xf = o.get("xflags", "")
    wf = o.get("wflags", "")
    CAP = o.get("cap", 32)
    A(f"""
    L_ld:
    s_setprio {o.get('lprio', 3)}
    v_lshrrev_b32 v3, 3, v1
    v_mul_u32_u24 v6, 6144, v3
    v_lshrrev_b32 v4, 4, v1
    v_and_b32 v7, 1, v4
    v_lshlrev_b32 v7, 2, v7
    v_and_b32 v5, 7, v1
    v_xor_b32 v7, v7, v5
    v_lshlrev_b32 v7, 4, v7
    s_lshl_b32 s51, s47, 7
    v_add_u32 v6, s51, v6
    v_add_u32 v24, v6, v7
    v_xor_b32 v13, 32, v24
    v_add_u32 v25, {8*6144-1024}, v13
    v_add_u32 v26, {2*(8*6144-1024)}, v24
    v_add_u32 v27, {3*(8*6144-1024)}, v13
    s_mov_b32 s52, {XR + 2*XSLOT}          ; x LDS slot base (stage t -> slot (t+2)%3)
    s_mov_b32 s53, {WR}
    s_lshl_b32 s54, s48, 7
    s_mul_i32 s55, s48, {64*6144}
    s_mov_b32 s56, 2
    s_mov_b32 s57, 0
    s_mov_b32 s60, 0
    """)

    def signal(sub):
        A(f"""
        s_sub_u32 s61, s56, {sub}
        s_max_u32 s60, s60, s61
        v_mov_b32 v14, s60
        ds_write_b32 v16, v14 offset:{F_CNT}
        """)

    def dma(kind, idx, cap):
        if cap is not None:
            A(f"s_waitcnt vmcnt({cap})")
        q = idx & 3
        if kind == "x":
            if q == 0:
                A(f"s_add_u32 m0, s52, {idx*1024}")
                A(f"s_add_u32 s58, s54, {idx*16384}")
            A(f"buffer_load_dwordx4 v{20 + q}, s[20:23], s58 offen offset:{q*1024} {xf} lds")
        else:
            if q == 0:
                A(f"s_add_u32 m0, s53, {idx*1024}")
                A(f"s_add_u32 s58, s55, {(idx >> 2)*2048}")
            A(f"buffer_load_dwordx4 v{24 + q}, s[24:27], s58 offen offset:{q*1024} {wf} lds")

    def advance(kind):
        if kind == "x":
            A(f"""
            s_add_u32 s54, s54, 128
            s_and_b32 s54, s54, 2047
            s_add_u32 s52, s52, {XSLOT}
            s_cmp_ge_u32 s52, {XR + 3*XSLOT}
            s_cselect_b32 s52, {XR}, s52
            """)
        else:
            A(f"""
            s_add_u32 s55, s55, {32*6144}
            s_cmp_ge_u32 s55, {1024*6144}
            s_cselect_b32 s55, 0, s55
            s_add_u32 s53, s53, {WSLOT}
            s_cmp_ge_u32 s53, {WR + 5*WSLOT}
            s_cselect_b32 s53, {WR}, s53
            """)
        A("s_add_u32 s56, s56, 1")

    sizes = {"x": 32, "w": 12}

    def unit(kind, prev, lab, check=True, cap=CAP):
        n = sizes[kind]
        if check:
            A(f"""
            s_add_u32 s59, s57, 9
            s_cmp_ge_u32 s59, s56
            s_cbranch_scc1 {lab}_go
            """)
            read_prog(A, F_PROG)
            A(f"""
            s_add_u32 s59, s57, 9
            s_cmp_ge_u32 s59, s56
            s_cbranch_scc1 {lab}_go
            """)
            cum = [sum(prev[:k]) for k in range(len(prev))]
            for k in reversed(range(len(prev))):
                if cum[k] > cap:
                    continue
                A(f"s_waitcnt vmcnt({cum[k]})")
                signal(k + 1)
            A(f"s_mov_b32 s66, 0")
            A(f"{lab}_spin:")
            read_prog(A, F_PROG)
            A(f"""
            s_add_u32 s66, s66, 1
            s_cmp_ge_u32 s66, {SPIN_MAX}
            s_cbranch_scc1 {lab}_go
            s_add_u32 s59, s57, 9
            s_cmp_ge_u32 s59, s56
            s_cbranch_scc0 {lab}_spin
            {lab}_go:
            """)
        for idx in range(n):
            dma(kind, idx, cap)
            for k in range(len(prev)):
                if sum(prev[:k]) + idx == cap:
                    signal(k + 1)
        advance(kind)

    unit("w", [], "L_u0", check=False, cap=None)
    A(f"""
    s_lshl_b32 s51, s45, 8
    v_add_u32 v3, s51, v3
    v_lshlrev_b32 v3, 11, v3               ; row*2048
    v_xor_b32 v4, v4, v5
    v_lshlrev_b32 v4, 4, v4
    v_add_u32 v20, v3, v4
    v_xor_b32 v11, 64, v20
    v_add_u32 v21, {16384-1024}, v11
    v_add_u32 v22, {2*(16384-1024)}, v20
    v_add_u32 v23, {3*(16384-1024)}, v11
    v_and_b32 v3, 3, v1
    v_lshlrev_b32 v16, 8, v3
    """)
    unit("x", [12], "L_u1", check=False, cap=None)
    unit("w", [], "L_u2", check=False, cap=None)
    A("s_barrier")
    A("s_waitcnt vmcnt(12)")
    signal(2)
    unit("w", [], "L_u3", check=False)
    A("s_waitcnt vmcnt(12)")
    signal(2)
    unit("x", [12], "L_u4", check=False)
    A("L_ld_loop:")
    unit("w", [32, 12, 12], "L_ua")
    unit("w", [12, 32, 12], "L_ub")
    unit("x", [12, 12, 32], "L_uc")
    A(f"""
    s_cmp_lt_u32 s56, {3*15+4}
    s_cbranch_scc1 L_ld_loop
    """)
    unit("w", [32, 12, 12], "L_ud")
    A("s_waitcnt vmcnt(44)")
    signal(3)
    A("s_waitcnt vmcnt(12)")
    signal(2)
    A(f"""
    v_lshrrev_b32 v3, 3, v1
    v_lshlrev_b32 v3, 11, v3
    v_bfe_u32 v4, v1, 4, 2
    v_lshlrev_b32 v4, 1, v4
    v_and_b32 v5, 7, v1
    v_xor_b32 v4, v4, v5
    v_lshlrev_b32 v4, 4, v4
    s_lshl_b32 s51, s89, 7
    v_add_u32 v3, s51, v3
    v_add_u32 v28, v3, v4
    v_add_u32 v29, {16384-1024}, v28
    v_add_u32 v30, {2*(16384-1024)}, v28
    v_add_u32 v31, {3*(16384-1024)}, v28
    s_mov_b32 s32, s80
    s_mov_b32 s33, s81
    s_mov_b32 s34, 0x200000
    s_mov_b32 s35, 0x20000
    s_mov_b32 s36, s10
    s_mov_b32 s37, s11
    s_mov_b32 s38, 0x200000
    s_mov_b32 s39, 0x20000
    s_waitcnt vmcnt(0)
    s_mov_b32 s56, 1001
    """)
    signal(1)
    stamp(A, o, 8)
    CAP3 = o.get("p3cap", 16)
    wof = o.get("woflags", "")
    A(f"""
    s_mov_b32 s52, {P3_RING}
    s_lshl_b32 s54, s49, 16
    s_mov_b32 s56, 0
    """)

    def unit3():
        for br in range(2):
            A(f"s_add_u32 m0, s52, {br*4096}")
            A(f"s_waitcnt vmcnt({CAP3})")
            for q in range(4):
                A(f"buffer_load_dwordx4 v{28+q}, s[{32+4*br}:{35+4*br}], s54 offen offset:{q*1024} {wof} lds")
        A(f"""
        s_add_u32 s54, s54, 65536
        s_and_b32 s54, s54, 0x1fffff
        s_add_u32 s52, s52, {P3_SLOT}
        s_cmp_ge_u32 s52, {P3_RING + P3_NSLOT*P3_SLOT}
        s_cselect_b32 s52, {P3_RING}, s52
        s_add_u32 s56, s56, 1
        """)

    def sig3(sub):
        A(f"""
        s_sub_u32 s61, s56, {sub}
        v_mov_b32 v14, s61
        ds_write_b32 v16, v14 offset:{F_CNT3}
        """)

    A(f"""
    s_mov_b32 s67, 42
    L3a_loop:
    s_mov_b32 s66, 0
    L3a_spin:
    """)
    read_prog(A, F_PROG)
    A(f"""
    s_add_u32 s66, s66, 1
    s_cmp_ge_u32 s66, {SPIN_MAX}
    s_cbranch_scc1 L3a_go
    s_cmp_ge_u32 s57, s67
    s_cbranch_scc0 L3a_spin
    L3a_go:
    """)
    unit3()
    A(f"""
    s_cmp_ge_u32 s56, {P3_NSLOT}
    s_cbranch_scc1 L3a_done
    s_and_b32 s61, s56, 3
    s_cmp_eq_u32 s61, 0
    s_cbranch_scc0 L3a_go
    s_add_u32 s67, s67, 3
    s_min_u32 s67, s67, 48
    s_branch L3a_loop
    L3a_done:
    s_mov_b32 s57, 0
    L3_ld_loop:
    s_add_u32 s59, s57, {P3_NSLOT}
    s_cmp_gt_u32 s59, s56
    s_cbranch_scc1 L3_go
    s_waitcnt vmcnt(0)
    """)
    sig3(0)
    stamp(A, o, 9)
    A(f"""
    s_mov_b32 s66, 0
    L3_spin:
    s_sleep 1
    """)
    read_prog(A, F_PROG3)
    A(f"""
    s_add_u32 s66, s66, 1
    s_cmp_ge_u32 s66, {SPIN_MAX}
    s_cbranch_scc1 L3_go
    s_add_u32 s59, s57, {P3_NSLOT}
    s_cmp_gt_u32 s59, s56
    s_cbranch_scc0 L3_spin
    L3_go:
    """)
    unit3()
    A(f"""
    s_cmp_lt_u32 s56, 32
    s_cbranch_scc1 L3_ld_loop
    s_waitcnt vmcnt(0)
    s_mov_b32 s56, 1000
    """)
    sig3(0)
    A("s_endpgm")


def wait_cnt(A, lab, val, sleep):
    A(f"""
    s_mov_b32 s66, 0
    {lab}:
    s_sleep {sleep}
    ds_read_b32 v17, v16 offset:{F_CNT}
    s_waitcnt lgkmcnt(0)
    s_add_u32 s66, s66, 1
    v_readfirstlane_b32 s62, v17
    s_cmp_ge_u32 s66, {SPIN_MAX}
    s_cbranch_scc1 {lab}_ok
    s_cmp_ge_u32 s62, {val}
    s_cbranch_scc0 {lab}
    {lab}_ok:
    """)


def clearer(A, o):
    A(f"""
    L_clr:
    s_mov_b32 s36, s12
    s_mov_b32 s37, s13
    s_mov_b32 s38, 256
    s_mov_b32 s39, 0x20000
    v_mov_b32 v16, 0
    v_mov_b32 v20, -1
    v_mov_b32 v21, -1
    v_mov_b32 v22, -1
    v_mov_b32 v23, -1
    v_lshlrev_b32 v2, 4, v1
    s_barrier
    """)
    wait_cnt(A, "L_clr_w", o.get("clr_at", 6), 4)
    A(f"""
    s_lshl_b32 s60, s45, 20
    s_lshl_b32 s61, s44, 11
    s_add_u32 s60, s60, s61
    """)
    th = o.get("clr_thin", 3)
    for i in range(16):
        A(f"buffer_store_dwordx4 v[20:23], v2, s[28:31], s60 offen sc0 sc1")
        A(f"buffer_store_dwordx4 v[20:23], v2, s[28:31], s60 offen offset:1024 sc0 sc1")
        A(f"s_add_u32 s60, s60, 65536")
        A(f"s_waitcnt vmcnt({th})")
    A(f"""
    s_lshl_b32 s60, s44, 16
    s_lshl_b32 s61, s45, 10
    s_add_u32 s60, s60, s61
    s_add_u32 s60, s60, {WS_KVP}
    """)
    for i in range(8):
        A(f"buffer_store_dwordx4 v[20:23], v2, s[28:31], s60 offen sc0 sc1")
        A(f"s_add_u32 s60, s60, 8192")
        A(f"s_waitcnt vmcnt({th})")
    A(f"""
    v_lshrrev_b32 v3, 2, v1
    v_lshlrev_b32 v3, 9, v3
    v_and_b32 v4, 3, v1
    v_lshlrev_b32 v4, 4, v4
    v_add_u32 v3, v3, v4
    s_lshl_b32 s60, s44, 11
    s_lshl_b32 s61, s45, 6
    s_add_u32 s60, s60, s61
    s_add_u32 s60, s60, {WS_ZP}
    s_mov_b64 exec, 0xffff
    buffer_store_dwordx4 v[20:23], v3, s[28:31], s60 offen sc0 sc1
    s_lshl_b32 s60, s45, 10
    s_lshl_b32 s61, s44, 5
    s_add_u32 s60, s60, s61
    s_add_u32 s60, s60, {WS_G}
    s_mov_b64 exec, 3
    buffer_store_dwordx4 v[20:23], v2, s[28:31], s60 offen sc0 sc1
    s_mov_b64 exec, 1
    v_mov_b32 v7, 1
    s_waitcnt vmcnt(0)
    buffer_atomic_add v7, v16, s[36:39], 0 offen sc1
    ds_write_b32 v16, v7 offset:{F_RDY + 4}
    s_mov_b64 exec, -1
    """)
    wait_cnt(A, "L_clr_w2", o.get("chk_at", 40), 16)
    A(f"""
    s_mov_b32 s66, 0
    L_clr_poll:
    buffer_load_dword v8, v16, s[36:39], 0 offen sc0 sc1
    s_waitcnt vmcnt(0)
    s_add_u32 s66, s66, 1
    v_readfirstlane_b32 s62, v8
    s_cmp_ge_u32 s66, {SPIN_MAX}
    s_cbranch_scc1 L_clr_ok
    s_cmp_ge_u32 s62, 256
    s_cbranch_scc1 L_clr_ok
    s_sleep 8
    s_branch L_clr_poll
    L_clr_ok:
    v_mov_b32 v7, 1
    ds_write_b32 v16, v7 offset:{F_RDY}
    s_endpgm
    """)


def gate(A, o):
    A(f"""
    L_gate:
    s_mov_b32 s32, s84
    s_mov_b32 s33, s85
    s_mov_b32 s34, 2048
    s_mov_b32 s35, 0x20000
    v_mov_b32 v16, 0
    s_barrier
    """)
    if o.get("tlbwarm", 1):
        for k in range(6):
            A(f"s_load_dword s{60+k}, s[14:15], {k << 19}") if False else None
        A(f"""
        s_add_u32 s68, s14, {1 << 20}
        s_addc_u32 s69, s15, 0
        """)
        for k in range(6):
            A(f"s_load_dword s{60+k}, s[68:69], 0")
            A(f"s_add_u32 s68, s68, {2 << 20}")
            A(f"s_addc_u32 s69, s69, 0")
        A(f"""
        s_load_dword s70, s[80:81], 0
        s_load_dword s71, s[80:81], 0xffffc
        s_load_dword s72, s[10:11], 0
        s_load_dword s73, s[10:11], 0xffffc
        s_load_dword s74, s[86:87], 0
        s_add_u32 s68, s86, {3 << 20}
        s_addc_u32 s69, s87, 0
        s_load_dword s75, s[68:69], 0
        s_load_dword s76, s[12:13], 0
        s_load_dword s77, s[84:85], 0
        s_waitcnt lgkmcnt(0)
        """)
    wait_cnt(A, "L_gate_w", o.get("gate_at", 30), 16)
    A(f"""
    s_lshl_b32 s60, s45, 8
    s_lshl_b32 s61, s44, 3
    s_add_u32 s60, s60, s61
    s_lshl_b32 s61, s60, 11
    v_lshlrev_b32 v2, 4, v1
    buffer_load_dwordx4 v[32:35], v2, s[32:35], 0 offen
    buffer_load_dwordx4 v[36:39], v2, s[32:35], 0 offen offset:1024
    """)
    for r in range(8):
        A(f"v_mov_b32 v{20 + r}, 0")
        A(f"buffer_load_dwordx4 {v(40 + 8*r, 4)}, v2, s[20:23], s61 offen")
        A(f"buffer_load_dwordx4 {v(44 + 8*r, 4)}, v2, s[20:23], s61 offen offset:1024")
        A("s_add_u32 s61, s61, 2048")
        A("s_waitcnt vmcnt(3)")
    for r in range(8):
        if r >= 6:
            A(f"s_waitcnt vmcnt({14 - 2*r})")
        for k in range(8):
            A(f"v_dot2c_f32_bf16 v{20 + r}, v{40 + 8*r + k}, v{32 + k}")
    A("s_nop 3")
    for mod in ("row_shr:1", "row_shr:2", "row_shr:4", "row_shr:8", "row_bcast:15 row_mask:0xa", "row_bcast:31 row_mask:0xc"):
        for r in range(8):
            m = mod if "row_mask" in mod else mod + " row_mask:0xf"
            A(f"v_add_f32_dpp v{20 + r}, v{20 + r}, v{20 + r} {m} bank_mask:0xf")
    A(f"s_mov_b32 s61, 0xbfb8aa3b")
    for r in range(8):
        A(f"v_mul_f32 v{20 + r}, s61, v{20 + r}")
    for r in range(8):
        A(f"v_exp_f32 v{20 + r}, v{20 + r}")
    for r in range(8):
        A(f"v_add_f32 v{20 + r}, 1.0, v{20 + r}")
    for r in range(8):
        A(f"v_rcp_f32 v{20 + r}, v{20 + r}")
    A(f"""
    s_mov_b32 s66, 0
    L_gate_c:
    ds_read_b32 v17, v16 offset:{F_RDY + 4}
    s_waitcnt lgkmcnt(0)
    s_add_u32 s66, s66, 1
    v_readfirstlane_b32 s62, v17
    s_cmp_ge_u32 s66, {SPIN_MAX}
    s_cbranch_scc1 L_gate_ok
    s_cmp_eq_u32 s62, 0
    s_cbranch_scc1 L_gate_c
    L_gate_ok:
    s_lshl_b32 s60, s60, 2
    s_add_u32 s60, s60, {WS_G}
    s_mov_b32 exec_lo, 0
    s_mov_b32 exec_hi, 0x80000000
    buffer_store_dwordx4 v[20:23], v16, s[28:31], s60 offen sc0 sc1
    buffer_store_dwordx4 v[24:27], v16, s[28:31], s60 offen offset:16 sc0 sc1
    s_endpgm
    """)


def consumer_main(A, o):
    A(f"""
    s_lshr_b32 s50, s41, 1                 ; wm
    s_and_b32 s51, s41, 1                  ; wn
    v_lshlrev_b32 v12, 4, v0
    v_mov_b32 v16, 0
    v_mov_b32 v17, 0
    v_mov_b32 v18, 0
    v_mov_b32 v19, 0
    ds_write_b128 v12, v[16:19]
    v_mov_b32 v5, v1
    v_and_b32 v12, 15, v5
    s_lshl_b32 s52, s50, 7
    v_add_u32 v12, s52, v12
    v_lshlrev_b32 v12, 7, v12
    v_lshrrev_b32 v13, 4, v5
    v_bfe_u32 v14, v5, 1, 3
    v_xor_b32 v13, v13, v14
    v_lshlrev_b32 v13, 4, v13
    v_add_u32 v12, v12, v13
    v_add_u32 v{V_AN}, {XR + 2*XSLOT}, v12
    v_lshrrev_b32 v12, 4, v5               ; g
    v_lshlrev_b32 v13, 10, v12
    v_bfe_u32 v14, v5, 2, 2                ; r
    v_lshlrev_b32 v15, 7, v14
    v_add_u32 v13, v13, v15
    v_and_b32 v14, 2, v14
    v_and_b32 v12, 1, v12
    v_or_b32 v12, v12, v14
    s_lshl_b32 s52, s51, 1
    v_xor_b32 v12, s52, v12
    v_lshlrev_b32 v12, 5, v12
    v_add_u32 v13, v13, v12
    v_and_b32 v12, 3, v5
    v_lshlrev_b32 v12, 3, v12
    v_add_u32 v13, v13, v12
    v_add_u32 v{V_B}, {WR}, v13
    v_xor_b32 v{V_B2}, 32, v{V_B}
    s_lshl_b32 s52, s41, 8
    s_mov_b32 m0, s52
    v_mov_b32 v{V_PW}, 1
    s_waitcnt lgkmcnt(0)
    s_barrier
    """)
    for r in range(ACC, 256):
        A(f"v_mov_b32 v{r}, 0")
    A(f"""
    s_mov_b32 s52, 2
    s_mov_b32 s53, 0
    s_mov_b32 s54, 0                       ; t
    s_mov_b32 s55, 3
    s_mov_b32 s70, {(-4*WSLOT) & 0xffffffff}
    s_mov_b32 s71, {WSLOT}
    s_mov_b32 s72, {(-2*XSLOT) & 0xffffffff}
    s_mov_b32 s73, {XSLOT}
    """)
    Q = LdsQ(A)

    def spin(label):
        A(f"""
        s_mov_b32 s63, 0
        {label}:
        ds_read_addtid_b32 v{V_F} offset:{F_CNT}
        s_waitcnt lgkmcnt(0)
        s_add_u32 s63, s63, 1
        v_readfirstlane_b32 s56, v{V_F}
        s_cmp_ge_u32 s63, {SPIN_MAX}
        s_cbranch_scc1 {label}_out
        s_cmp_ge_u32 s56, s55
        s_cbranch_scc0 {label}
        {label}_out:
        """)

    def rdA(i, tag):
        Q.issue(f"ds_read_b128 {v(VA[i >> 2] + 4*(i & 3), 4)}, v{V_AN} offset:{i*2048}", tag)

    def rdB(j, half, tag):
        ad = V_B2 if (j & 1) else V_B
        Q.issue(f"ds_read_b64_tr_b16 {v(VB + 4*j + 2*half, 2)}, v{ad} offset:{(j >> 1)*4096 + half*512}", tag)

    spin("L_c_spin0")
    stamp(A, o, 1)
    for i in range(4):
        rdA(i, "a%d" % i)
    for j in range(5):
        rdB(j, 0, "b%d" % j); rdB(j, 1, "b%d" % j)
    Q.drain()
    slow = []

    def loop_body():
        for st in range(2):
            fill = {}
            def at(n, fn):
                fill.setdefault(n, []).append(fn)
            at(1, lambda: rdB(5, 0, "b5"))
            at(2, lambda: rdB(5, 1, "b5"))
            at(3, lambda: Q.issue(f"ds_write_addtid_b32 v{V_PW} offset:{F_PROG}", "pw"))
            at(4, lambda: A(f"s_add_u32 s53, s53, 1\ns_cmp_eq_u32 s53, 5"))
            at(5, lambda: Q.issue(f"ds_read_addtid_b32 v{V_F} offset:{F_CNT}", "f"))
            at(5, lambda: A(f"s_cselect_b32 s53, 0, s53"))
            at(6, lambda: rdA(4, "a4"))
            at(6, lambda: A(f"s_cselect_b32 s57, s70, s71"))
            at(7, lambda: A(f"v_add_u32 v{V_B}, s57, v{V_B}"))
            at(8, lambda: rdA(5, "a5"))
            at(9, lambda: A(f"v_add_u32 v{V_B2}, s57, v{V_B2}"))
            at(10, lambda: rdA(6, "a6"))
            at(11, lambda: A(f"v_add_u32 v{V_PW}, 1, v{V_PW}"))
            at(12, lambda: rdA(7, "a7"))
            at(14, lambda: A(f"s_add_u32 s55, s55, {1 if st == 0 else 2}"))
            if st == 0:
                at(15, lambda: A(f"v_xor_b32 v{V_AN}, 64, v{V_AN}"))
            else:
                at(13, lambda: Q.issue(f"ds_write_addtid_b32 v{V_PW} offset:{F_PROG}", "px"))
                at(15, lambda: A(f"s_add_u32 s52, s52, 1\ns_cmp_eq_u32 s52, 3"))
                at(16, lambda: A(f"s_cselect_b32 s52, 0, s52\ns_cselect_b32 s57, s72, s73"))
                at(17, lambda: A(f"v_xor_b32 v{V_AN}, 64, v{V_AN}"))
                at(18, lambda: A(f"v_add_u32 v{V_AN}, s57, v{V_AN}"))
                at(19, lambda: A(f"v_add_u32 v{V_PW}, 1, v{V_PW}"))
            at(22, lambda: A(f"v_readfirstlane_b32 s56, v{V_F}"))
            def chk():
                lab = f"L_c_slow{st}"
                A(f"s_cmp_ge_u32 s56, s55")
                A(f"s_cbranch_scc0 {lab}")
                A(f"{lab}_ret:")
                slow.append(lab)
            at(24, chk)
            at(25, lambda: rdA(0, "a0"))
            at(26, lambda: rdA(1, "a1"))
            at(27, lambda: rdA(2, "a2"))
            at(31, lambda: rdA(3, "a3"))
            for j in range(5):
                at(24 + 4*(j+1) + 1, lambda j=j: rdB(j, 0, "b%d" % j))
                at(24 + 4*(j+1) + 2, lambda j=j: rdB(j, 1, "b%d" % j))
            if st == 1:
                at(47, lambda: A("s_add_u32 s54, s54, 1"))
                at(48, lambda: A("s_cmp_lt_u32 s54, 16\ns_cbranch_scc1 L_c_loop"))
            n = 0
            for g in range(2):
                for j in range(6):
                    for ii in range(4):
                        i = g * 4 + ii
                        n += 1
                        if g == 0 and ii == 0:
                            if j == 0:
                                Q.need("a0", "a1", "a2", "a3", "b0")
                            elif j == 5:
                                Q.need("b5", "f")
                            else:
                                Q.need("b%d" % j)
                        if g == 1 and j == 0 and ii == 0:
                            Q.need("a4", "a5", "a6", "a7")
                        ar, br = VA[g] + 4*ii, VB + 4*j
                        if j < 2:
                            mfma(A, acc(i, j), br, ar)
                        else:
                            mfma(A, acc(i, j), ar, br)
                        for fn in fill.get(n, []):
                            fn()

    saved = A.lines
    A.lines = []
    loop_body()
    carried = list(Q.q)
    A.lines = []
    loop_body()
    assert Q.q == carried
    A.lines = saved
    del slow[:]
    A("s_branch L_c_loop")
    for st in range(2):
        lab = f"L_c_slow{st}"
        A(f"{lab}:")
        spin(lab + "_sp")
        A(f"s_branch {lab}_ret")
    A(".p2align 6")
    A("L_c_loop:")
    loop_body()
    A("s_waitcnt lgkmcnt(0)")
    A("v_mbcnt_lo_u32_b32 v1, -1, 0")
    A("v_mbcnt_hi_u32_b32 v1, -1, v1")


KV_ACC, Z_ACC, ONES, TMP = 8, 24, 32, 36


def phi8(A, regs, tmp, dst):
    for k in range(0, 8, 2):
        A(f"v_pk_mul_f32 {v(tmp + k, 2)}, {v(regs[k], 2)}, s[76:77]")
    for k in range(8):
        A(f"v_exp_f32 v{tmp + k}, v{tmp + k} clamp")
    for k in range(8):
        A(f"v_max_f32 v{regs[k]}, s78, v{regs[k]}")
    for k in range(0, 8, 2):
        A(f"v_pk_add_f32 {v(regs[k], 2)}, {v(regs[k], 2)}, {v(tmp + k, 2)}")
    for k in range(4):
        A(f"v_cvt_pk_bf16_f32 v{dst + k}, v{regs[2*k]}, v{regs[2*k+1]}")


def lds_sync_read(A, lab, flag_addr_v, flag_off, val, reads, fv):
    A(f"s_mov_b32 s63, 0")
    A(f"{lab}:")
    A(f"ds_read_b32 v{fv}, v{flag_addr_v} offset:{flag_off}")
    for r in reads:
        A(r)
    A(f"""
    s_waitcnt lgkmcnt(0)
    s_add_u32 s63, s63, 1
    v_readfirstlane_b32 s56, v{fv}
    s_cmp_ge_u32 s63, {SPIN_MAX}
    s_cbranch_scc1 {lab}_ok
    s_cmp_ge_u32 s56, {val}
    s_cbranch_scc0 {lab}
    {lab}_ok:
    """)


def consumer_epilogue(A, o):
    A(f"""
    s_mov_b32 s76, {LOG2E}
    s_mov_b32 s77, {LOG2E}
    s_mov_b32 s78, {EPS}
    v_mov_b32 v{ONES}, 0x3f803f80
    v_mov_b32 v{ONES+1}, 0x3f803f80
    v_mov_b32 v{ONES+2}, 0x3f803f80
    v_mov_b32 v{ONES+3}, 0x3f803f80
    v_lshlrev_b32 v2, 4, v1                ; lane*16
    v_and_b32 v6, 3, v1
    v_lshlrev_b32 v6, 8, v6                ; (l&3)*256
    s_xor_b32 s61, s41, 2
    s_lshl_b32 s62, s61, 8
    v_mov_b32 v7, s62
    s_mul_i32 s60, s41, 3072
    s_mul_i32 s61, s61, 3072
    s_add_u32 s60, s60, {E_XCH}
    s_add_u32 s61, s61, {E_XCH}
    v_add_u32 v3, s60, v2
    v_add_u32 v4, s61, v2
    s_lshl_b32 s62, s44, 1
    s_add_u32 s62, s62, s51
    s_lshl_b32 s62, s62, 1
    s_add_u32 s62, s62, s50
    s_lshl_b32 s67, s62, 14
    s_add_u32 s67, s67, {WS_KVP}
    s_lshl_b32 s64, s45, 10
    s_add_u32 s68, s67, s64
    s_add_u32 s64, s68, 8192
    s_lshl_b32 s69, s62, 9
    s_add_u32 s69, s69, {WS_ZP}
    s_lshl_b32 s66, s45, 6
    s_add_u32 s65, s69, s66
    v_lshrrev_b32 v5, 4, v1
    v_lshlrev_b32 v5, 4, v5                ; g*16
    """)
    for ip in range(4):
        for jk in range(2):
            b = acc(2*ip, 2 + jk)
            phi8(A, list(range(b, b + 8)), TMP + 8*jk, b)
        for jv in range(2):
            b = acc(2*ip, 4 + jv)
            for k in range(4):
                A(f"v_cvt_pk_bf16_f32 v{b + k}, v{b + 2*k}, v{b + 2*k + 1}")
        if ip == 3:
            A(f"ds_read_b32 v52, v6 offset:{F_PROG}")
            A(f"v_mov_b32 v53, 1")
        else:
            A("s_nop 1")
        for jk in range(2):
            pk = acc(2*ip, 2 + jk)
            c0 = "0" if ip == 0 else None
            mfma(A, Z_ACC + 4*jk, pk, ONES, c0)
            for jv in range(2):
                mfma(A, KV_ACC + (jk*2 + jv)*4, pk, acc(2*ip, 4 + jv), c0)
    A(f"""
    s_mov_b32 s63, 0
    L_e_b0:
    s_waitcnt lgkmcnt(0)
    v_cmp_gt_u32 vcc, 47, v52
    s_add_u32 s63, s63, 1
    s_cmp_ge_u32 s63, {SPIN_MAX}
    s_cbranch_scc1 L_e_b0ok
    s_cbranch_vccz L_e_b0ok
    ds_read_b32 v52, v6 offset:{F_PROG}
    s_branch L_e_b0
    L_e_b0ok:
    s_cmp_eq_u32 s50, 0
    s_cbranch_scc0 L_e_wm1
    """)
    for wm in range(2):
        if wm == 1:
            A("L_e_wm1:")
        keep, send = wm, 1 - wm
        A("s_nop 3")
        A(f"ds_write_b128 v3, {v(KV_ACC + (send*2)*4, 4)}")
        A(f"ds_write_b128 v3, {v(KV_ACC + (send*2+1)*4, 4)} offset:1024")
        A(f"ds_write_b128 v3, {v(Z_ACC + send*4, 4)} offset:2048")
        A(f"ds_write_addtid_b32 v53 offset:{F_SY}")
        lds_sync_read(A, f"L_e_x{wm}", 7, F_SY, 1,
                      [f"ds_read_b128 {v(TMP, 4)}, v4", f"ds_read_b128 {v(TMP+4, 4)}, v4 offset:1024",
                       f"ds_read_b128 {v(TMP+8, 4)}, v4 offset:2048"], 52)
        k0 = KV_ACC + keep*8
        for k in range(0, 8, 2):
            A(f"v_pk_add_f32 {v(TMP + k, 2)}, {v(TMP + k, 2)}, {v(k0 + k, 2)}")
        for k in range(0, 4, 2):
            A(f"v_pk_add_f32 {v(TMP + 8 + k, 2)}, {v(TMP + 8 + k, 2)}, {v(Z_ACC + keep*4 + k, 2)}")
        if wm == 0:
            A("s_branch L_e_pub")
    A("L_e_pub:")
    A("v_mov_b32 v54, 0")
    lds_sync_read(A, "L_e_rdy", 54, F_RDY, 1, [], 52)
    A(f"""
    buffer_store_dwordx4 {v(TMP, 4)}, v2, s[28:31], s68 offen sc0 sc1
    buffer_store_dwordx4 {v(TMP+4, 4)}, v2, s[28:31], s64 offen sc0 sc1
    s_mov_b32 exec_lo, 0x00010001
    s_mov_b32 exec_hi, 0x00010001
    buffer_store_dwordx4 {v(TMP+8, 4)}, v5, s[28:31], s65 offen sc0 sc1
    s_mov_b64 exec, -1
    """)
    stamp(A, o, 3, vt=8)
    T2 = 48
    ZB = 224
    KB = 128

    def phiq(i):
        a_, b_ = acc(i, 0), acc(i, 1)
        phi8(A, [a_, a_+1, a_+2, a_+3, b_, b_+1, b_+2, b_+3], T2 + 8*(i & 1), a_)

    def zloads():
        for rb in range(8):
            A(f"buffer_load_dwordx4 {v(ZB + rb*4, 4)}, v5, s[28:31], s69 offen offset:{rb*64} sc0 sc1")

    nq1 = o.get("nq1", 5)
    for i in range(nq1):
        phiq(i)
    zloads()
    for i in range(nq1, 8):
        phiq(i)
    A(f"""
    s_add_u32 s72, s67, 4096
    s_add_u32 s73, s67, 8192
    s_add_u32 s74, s67, 12288
    s_mov_b32 s79, 0
    L_g_retry:
    s_mov_b32 s70, 0
    L_g_round:
    s_waitcnt vmcnt(0)
    s_mov_b32 s71, s70
    """)
    for rb in range(8):
        A(f"""
        v_cmp_eq_u32 vcc, -1, v{ZB + rb*4}
        s_bitcmp1_b32 s70, {rb}
        s_cbranch_scc1 L_g_s{rb}
        s_cbranch_vccnz L_g_s{rb}
        s_bitset1_b32 s70, {rb}
        buffer_load_dwordx4 {v(KB + rb*4, 4)}, v2, s[28:31], s{67 if rb < 4 else 72} offen offset:{(rb & 3)*1024} sc0 sc1
        buffer_load_dwordx4 {v(KB + 32 + rb*4, 4)}, v2, s[28:31], s{73 if rb < 4 else 74} offen offset:{(rb & 3)*1024} sc0 sc1
        L_g_s{rb}:
        """)
    A(f"""
    s_cmp_eq_u32 s70, 255
    s_cbranch_scc1 L_g_all
    s_add_u32 s79, s79, 1
    s_cmp_ge_u32 s79, {SPIN_MAX // 8}
    s_cbranch_scc1 L_g_all
    """)
    zloads()
    A("s_branch L_g_round")
    A("L_g_all:")
    stamp(A, o, 4, vt=8)
    def sum8(b, dst):
        A(f"v_pk_add_f32 {v(dst, 2)}, {v(b, 2)}, {v(b + 4, 2)}")
        A(f"v_pk_add_f32 {v(dst + 2, 2)}, {v(b + 2, 2)}, {v(b + 6, 2)}")
        for rb in range(2, 8):
            for k in (0, 2):
                A(f"v_pk_add_f32 {v(dst + k, 2)}, {v(dst + k, 2)}, {v(b + rb*4 + k, 2)}")
    sum8(ZB, 16)
    A(f"""
    s_mul_i32 s60, s51, 3072
    s_add_u32 s60, s60, {E_OPS}
    v_add_u32 v4, s60, v2
    s_lshl_b32 s61, s50, 3
    v_add_u32 v3, s61, v4
    v_mov_b32 v53, 2
    s_waitcnt vmcnt(0)
    """)
    sum8(KB, 8)
    sum8(KB + 32, 12)
    for k in range(6):
        A(f"v_cmp_u_f32 s[{52+2*(k % 2)}:{53+2*(k % 2)}], v{8+2*k}, v{9+2*k}")
        if k == 1:
            A("s_or_b64 s[58:59], s[52:53], s[54:55]")
        elif k >= 2:
            A(f"s_or_b64 s[58:59], s[58:59], s[{52+2*(k % 2)}:{53+2*(k % 2)}]")
    A(f"""
    s_cbranch_scc0 L_g_ok
    s_add_u32 s79, s79, 64
    s_cmp_ge_u32 s79, {SPIN_MAX // 8}
    s_cbranch_scc1 L_g_ok
    """)
    zloads()
    A("s_branch L_g_retry")
    A("L_g_ok:")
    for t in range(3):
        b = 8 + 4*t
        A(f"v_cvt_pk_bf16_f32 v{b}, v{b}, v{b+1}")
        A(f"v_cvt_pk_bf16_f32 v{b+1}, v{b+2}, v{b+3}")
        A(f"ds_write_b64 v3, {v(b, 2)} offset:{t*1024}")
    A(f"ds_write_addtid_b32 v53 offset:{F_SY}")
    A(f"""
    s_lshl_b32 s60, s45, 4
    s_lshl_b32 s61, s50, 3
    s_add_u32 s60, s60, s61
    s_lshl_b32 s60, s60, 6
    s_lshl_b32 s61, s44, 1
    s_add_u32 s60, s60, s61
    s_add_u32 s60, s60, s51
    s_lshl_b32 s60, s60, 10
    """)
    lds_sync_read(A, "L_e_ops", 7, F_SY, 2,
                  ["ds_read_b128 v[20:23], v4", "ds_read_b128 v[24:27], v4 offset:1024", "ds_read_b128 v[28:31], v4 offset:2048"], 52)
    stamp(A, o, 5, vt=8)
    for i in range(8):
        pq = acc(i, 0)
        n0 = 128 + i * 12
        mfma(A, n0 + 8, 28, pq, "0")
        mfma(A, n0, 20, pq, "0")
        mfma(A, n0 + 4, 24, pq, "0")
    for i in range(8):
        n0 = 128 + i * 12
        A(f"v_add_f32 v{n0 + 8}, s78, v{n0 + 8}")
        A(f"v_rcp_f32 v{n0 + 8}, v{n0 + 8}")
        A("s_nop 0")
        for k in range(0, 8, 2):
            A(f"v_pk_mul_f32 {v(n0 + k, 2)}, {v(n0 + k, 2)}, {v(n0 + 8, 2)} op_sel_hi:[1,0]")
        for k in range(4):
            A(f"v_cvt_pk_bf16_f32 v{224 + 4*i + k}, v{n0 + 2*k}, v{n0 + 2*k + 1}")
        A(f"buffer_store_dwordx4 {v(224 + 4*i, 4)}, v2, s[28:31], s60 offen sc0 sc1")
        A(f"s_add_u32 s60, s60, 65536")
    stamp(A, o, 6, vt=8)


def p3_consumer(A, o):
    D = o.get("p3d", 3)
    NB = D + 1
    WF = [8, 24]
    OB = 40
    AC = 128
    assert OB + NB * 16 <= 120
    CK = 120
    def ac(jn, i):
        return AC + (jn * 4 + i) * 4
    of = "sc0 sc1"
    full = o.get("fullcheck", 1)
    A(f"""
    s_lshl_b32 s60, s88, 3
    s_lshl_b32 s61, s51, 2
    s_add_u32 s60, s60, s61
    s_lshl_b32 s52, s60, 16
    s_lshl_b32 s61, s50, 15
    s_add_u32 s52, s52, s61
    s_add_u32 s53, s52, 65536
    s_add_u32 s54, s52, 131072
    s_add_u32 s55, s52, 196608
    s_lshl_b32 s61, s49, 10
    v_add_u32 v2, s61, v2
    """)

    def ldO(buf, addr="v2"):
        for i in range(4):
            A(f"buffer_load_dwordx4 {v(OB + buf*16 + 4*i, 4)}, {addr}, s[28:31], s{52+i} offen {of}")

    def advO():
        A("v_add_u32 v2, 1024, v2")
        A("v_and_b32 v2, 0x7fff, v2")
    for d in range(D):
        ldO(d)
        advO()
    A(f"""
    v_lshrrev_b32 v12, 4, v1               ; g
    v_lshrrev_b32 v13, 1, v12
    v_lshlrev_b32 v13, 10, v13
    v_and_b32 v12, 1, v12
    v_lshlrev_b32 v12, 2, v12
    v_bfe_u32 v14, v1, 2, 2
    v_add_u32 v12, v12, v14                ; rr
    v_lshlrev_b32 v14, 7, v12
    v_add_u32 v13, v13, v14
    v_lshrrev_b32 v12, 1, v12
    v_lshlrev_b32 v12, 5, v12
    v_add_u32 v13, v13, v12
    v_and_b32 v12, 3, v1
    v_lshlrev_b32 v12, 3, v12
    v_add_u32 v13, v13, v12
    s_lshl_b32 s61, s50, 12
    s_add_u32 s61, s61, {P3_RING}
    v_add_u32 v4, s61, v13
    v_xor_b32 v5, 32, v4
    v_xor_b32 v6, 64, v4
    v_xor_b32 v7, 96, v4
    v_mov_b32 v3, 1
    s_mov_b32 s56, 0
    s_mov_b32 s57, 0
    s_mov_b32 s58, 0
    s_mov_b32 s59, 1
    s_mov_b32 s70, {(-(P3_NSLOT-1)*P3_SLOT) & 0xffffffff}
    s_mov_b32 s71, {P3_SLOT}
    s_mov_b32 s79, 0
    s_mov_b32 s32, s86
    s_mov_b32 s33, s87
    s_mov_b32 s34, 0x400000
    s_mov_b32 s35, 0x20000
    """)
    nl = [0]
    def wait_full():
        nl[0] += 1
        L = f"L3_w{nl[0]}"
        A(f"""
        s_cmp_ge_u32 s58, s59
        s_cbranch_scc1 {L}_ok
        s_mov_b32 s63, 0
        {L}:
        ds_read_addtid_b32 v0 offset:{F_CNT3}
        s_waitcnt lgkmcnt(0)
        s_add_u32 s63, s63, 1
        v_readfirstlane_b32 s58, v0
        s_cmp_ge_u32 s63, {SPIN_MAX}
        s_cbranch_scc1 {L}_ok
        s_cmp_ge_u32 s58, s59
        s_cbranch_scc0 {L}
        {L}_ok:
        s_add_u32 s59, s59, 1
        """)

    def rdW(buf, jn, half):
        A(f"ds_read_b64_tr_b16 {v(WF[buf] + 4*jn + 2*half, 2)}, v{4+jn} offset:{half*2048}")

    def adv():
        A(f"""
        ds_write_addtid_b32 v3 offset:{F_PROG3}
        s_add_u32 s57, s57, 1
        s_cmp_eq_u32 s57, {P3_NSLOT}
        s_cselect_b32 s57, 0, s57
        s_cselect_b32 s62, s70, s71
        """)

    def check(buf):
        b = OB + buf*16
        regs = list(range(b, b + 16)) if full else [b, b + 4, b + 8, b + 12]
        ins = []
        ins.append(f"v_max3_u32 v{CK}, v{regs[0]}, v{regs[1]}, v{regs[2]}")
        rest = regs[3:]
        while len(rest) >= 2:
            ins.append(f"v_max3_u32 v{CK}, v{CK}, v{rest[0]}, v{rest[1]}")
            rest = rest[2:]
        if rest:
            ins.append(f"v_max_u32 v{CK}, v{CK}, v{rest[0]}")
        ins.append(f"v_cmp_eq_u32 vcc, -1, v{CK}")
        return ins

    wait_full()
    for jn in range(4):
        rdW(0, jn, 0); rdW(0, jn, 1)
    adv()
    for jn in range(4):
        A(f"v_add_u32 v{4+jn}, s62, v{4+jn}")
    A("v_add_u32 v3, 1, v3")
    for r in range(AC, AC + 64):
        A(f"v_mov_b32 v{r}, 0")
    U = NB * 2 // math.gcd(NB, 2)
    assert 32 % U == 0
    fix = []
    A("L3_loop:")
    for u in range(U):
        wb, ob = u & 1, u % NB
        wait_full()
        A(f"s_waitcnt vmcnt({4*(D-1)})")
        for ins in check(ob):
            A(ins)
        A(f"s_waitcnt lgkmcnt(0)")
        A(f"s_cbranch_vccnz L3_fix{u}")
        A(f"L3_ret{u}:")
        fix.append((u, ob))
        n = 0
        for jn in range(4):
            for i in range(4):
                n += 1
                mfma(A, ac(jn, i), WF[wb] + 4*jn, OB + ob*16 + 4*i)
                if n <= 8:
                    rdW(wb ^ 1, (n-1) >> 1, (n-1) & 1)
                if n == 9:
                    adv()
                if 10 <= n <= 13:
                    A(f"v_add_u32 v{4+n-10}, s62, v{4+n-10}")
                    A(f"buffer_load_dwordx4 {v(OB + ((u + D) % NB)*16 + 4*(n-10), 4)}, v2, s[28:31], s{52+n-10} offen {of}")
                if n == 14:
                    advO()
                if n == 15:
                    A("v_add_u32 v3, 1, v3")
    A(f"""
    s_add_u32 s56, s56, {U}
    s_cmp_lt_u32 s56, 32
    s_cbranch_scc1 L3_loop
    s_branch L3_done
    """)
    for (u, ob) in fix:
        A(f"""
        L3_fix{u}:
        v_subrev_u32 v{CK+1}, {D*1024}, v2
        v_and_b32 v{CK+1}, 0x7fff, v{CK+1}
        L3_fixl{u}:
        s_sleep {o.get('fixsleep', 2)}
        """)
        ldO(ob, f"v{CK+1}")
        A("s_waitcnt vmcnt(0)")
        for ins in check(ob):
            A(ins)
        A(f"""
        s_add_u32 s79, s79, 1
        s_cmp_ge_u32 s79, {SPIN_MAX // 8}
        s_cbranch_scc1 L3_ret{u}
        s_cbranch_vccnz L3_fixl{u}
        s_branch L3_ret{u}
        """)
    A("L3_done:")
    stamp(A, o, 7, vt=122)
    A(f"""
    v_and_b32 v0, 15, v1
    v_lshlrev_b32 v0, 2, v0
    s_lshl_b32 s61, s60, 6
    s_add_u32 s61, s61, {WS_G}
    s_waitcnt vmcnt(0) lgkmcnt(0)
    L3_gl:
    buffer_load_dword v8, v0, s[28:31], s61 offen {of}
    buffer_load_dword v10, v0, s[28:31], s61 offen offset:64 {of}
    buffer_load_dword v12, v0, s[28:31], s61 offen offset:128 {of}
    buffer_load_dword v14, v0, s[28:31], s61 offen offset:192 {of}
    v_lshlrev_b32 v2, 4, v1
    s_lshl_b32 s62, s41, 13
    s_xor_b32 s63, s41, 2
    s_lshl_b32 s63, s63, 13
    v_add_u32 v3, s62, v2
    v_add_u32 v4, s63, v2
    v_and_b32 v5, 15, v1
    v_lshlrev_b32 v5, 11, v5
    v_lshrrev_b32 v6, 4, v1
    v_lshlrev_b32 v6, 3, v6
    v_add_u32 v5, v5, v6
    s_lshl_b32 s62, s60, 15
    s_lshl_b32 s63, s89, 7
    s_add_u32 s62, s62, s63
    s_lshl_b32 s63, s50, 6
    s_add_u32 s62, s62, s63
    s_waitcnt vmcnt(0)
    v_max3_u32 v9, v8, v10, v12
    v_max_u32 v9, v9, v14
    v_cmp_eq_u32 vcc, -1, v9
    s_add_u32 s79, s79, 1
    s_cmp_ge_u32 s79, {SPIN_MAX // 8}
    s_cbranch_scc1 L3_gok
    s_cbranch_vccnz L3_gl
    L3_gok:
    s_barrier
    s_cmp_eq_u32 s50, 0
    s_cbranch_scc0 L3_br1
    """)
    for br in range(2):
        if br == 1:
            A("L3_br1:")
            for i in range(4):
                A(f"v_sub_f32 v{8+2*i}, 1.0, v{8+2*i}")
        keep = [0, 1] if br == 0 else [2, 3]
        send = [2, 3] if br == 0 else [0, 1]
        for k, jn in enumerate(send):
            for i in range(4):
                r = ac(jn, i)
                A(f"v_pk_mul_f32 {v(r, 2)}, {v(r, 2)}, {v(8+2*i, 2)} op_sel_hi:[1,0]")
                A(f"v_pk_mul_f32 {v(r+2, 2)}, {v(r+2, 2)}, {v(8+2*i, 2)} op_sel_hi:[1,0]")
                A(f"ds_write_b128 v3, {v(r, 4)} offset:{P3_RING + (k*4+i)*1024}")
        A("s_waitcnt lgkmcnt(0)")
        A("s_barrier")
        for k in range(8):
            A(f"ds_read_b128 {v(40 + 4*k, 4)}, v4 offset:{P3_RING + k*1024}")
        for k, jn in enumerate(keep):
            for i in range(4):
                r = ac(jn, i)
                t = 40 + (k*4 + i)*4
                A(f"s_waitcnt lgkmcnt({7 - (k*4+i)})")
                A(f"v_pk_fma_f32 {v(t, 2)}, {v(r, 2)}, {v(8+2*i, 2)}, {v(t, 2)} op_sel_hi:[1,0,1]")
                A(f"v_pk_fma_f32 {v(t+2, 2)}, {v(r+2, 2)}, {v(8+2*i, 2)}, {v(t+2, 2)} op_sel_hi:[1,0,1]")
                A(f"v_cvt_pk_bf16_f32 v{t}, v{t}, v{t+1}")
                A(f"v_cvt_pk_bf16_f32 v{t+1}, v{t+2}, v{t+3}")
                A(f"s_add_u32 s63, s62, {i*32768}")
                A(f"buffer_store_dwordx2 {v(t, 2)}, v5, s[32:35], s63 offen offset:{k*32}")
        stamp(A, o, 10, vt=122)
        A("s_endpgm")


def build(o):
    name = KNAME + "_kernel"
    A = Asm()
    prologue(A, o)
    stamp(A, o, 0)
    A("""
    s_cmp_eq_u32 s41, 4
    s_cbranch_scc1 L_ld
    s_cmp_eq_u32 s41, 5
    s_cbranch_scc1 L_clr
    s_cmp_eq_u32 s41, 6
    s_cbranch_scc1 L_gate
    """)
    consumer_main(A, o)
    stamp(A, o, 2)
    consumer_epilogue(A, o)
    p3_consumer(A, o)
    loader(A, o)
    clearer(A, o)
    gate(A, o)
    A("L_end:")
    A("s_endpgm")
    txt = HEADER + f"; @launch grid=(256,1,1) block=(448,1,1) lds={LDS_TOTAL}\n"
    txt += '.amdgcn_target "amdgcn-amd-amdhsa--gfx950"\n.text\n' + kernel_begin(name) + A.text()
    txt += '.section .rodata,"a"\n' + kernel_desc(name, 256, 100, 256)
    return txt


if __name__ == "__main__":
    o = {}
    open(sys.argv[1] if len(sys.argv) > 1 else "k2.s", "w").write(build(o))
```
